```python
import torch

def _softmax(x, axis=-1):
    return torch.softmax(x, dim=axis)
def _gelu(x):
    return torch.nn.functional.gelu(x, approximate="tanh")
def _silu(x):
    return torch.nn.functional.silu(x)
def _sigmoid(x):
    return torch.sigmoid(x)
def _layernorm(x, axis=-1, eps=1e-5):
    m = x.mean(dim=axis, keepdim=True)
    v = x.var(dim=axis, keepdim=True, unbiased=False)
    return (x - m) / torch.sqrt(v + eps)
def _scatter_add(tgt, idx, src, axis=0):
    return tgt.clone().index_add_(axis, idx, src)
def _segment_sum(src, seg, n):
    out = torch.zeros((n,) + src.shape[1:], dtype=src.dtype)
    return out.index_add_(0, seg, src)
def _pad(x, pw):
    flat = tuple(v for pair in reversed(pw) for v in pair)
    return torch.nn.functional.pad(x, flat)

kernel_name = 'parallel_sum__sliding_block__glu_gated_bilinear__prompt'

def setup_inputs():

    _w = (lambda a: (lambda t: t.to(torch.bfloat16) if t.is_floating_point() else t)(torch.as_tensor(a)))
    def _A_setup():
        B, S, D = 1, 2048, 640
        return {
            "x": _w((lambda *s: torch.randn(*s, dtype=torch.bfloat16) * 0.05)(B, S, D)),
            "wqkv": _w((lambda *s: torch.randn(*s, dtype=torch.bfloat16) * 0.05)(D, 3 * D)),
            "wo": _w((lambda *s: torch.randn(*s, dtype=torch.bfloat16) * 0.05)(D, D)),
        }
    _A_in = _A_setup()

    def _B_setup():
        B, S, D, F = 1, 2048, 640, 1536
        return {
            "x": _w((lambda *s: torch.randn(*s, dtype=torch.bfloat16) * 0.05)(B, S, D)),
            "w_gate": _w((lambda *s: torch.randn(*s, dtype=torch.bfloat16) * 0.8)(D, F) * (D ** -0.5)),
            "w_up": _w((lambda *s: torch.randn(*s, dtype=torch.bfloat16) * 0.8)(D, F) * (D ** -0.5)),
            "w_down": _w((lambda *s: torch.randn(*s, dtype=torch.bfloat16) * 0.8)(F, D) * (F ** -0.5)),
        }
    _B_in = _B_setup()

    return {
        "A_x": _A_in["x"],
        "A_wqkv": _A_in["wqkv"],
        "A_wo": _A_in["wo"],
        "B_x": _B_in["x"],
        "B_w_gate": _B_in["w_gate"],
        "B_w_up": _B_in["w_up"],
        "B_w_down": _B_in["w_down"],
    }

def reference(A_x, A_wqkv, A_wo, B_x, B_w_gate, B_w_up, B_w_down):
    def _A_ref(x, wqkv, wo):
        B, S, D = x.shape
        H = 32; Dh = D // H; W = 256
        qkv = (lambda x, *d: x.permute(*d))((x @ wqkv).reshape(B, S, 3, H, Dh), 2, 0, 3, 1, 4)
        q, k, v = qkv[0], qkv[1], qkv[2]
        scores = torch.einsum("bhqd,bhkd->bhqk", q, k) * (Dh ** -0.5)
        idx = torch.arange(S)
        mask = (idx[:, None] - idx[None, :] >= 0) & (idx[:, None] - idx[None, :] < W)
        scores = torch.where(mask[None, None], scores, -1e9)
        p = _softmax(scores, axis=-1)
        o = torch.einsum("bhqk,bhkd->bhqd", p, v)
        return (lambda x, *d: x.permute(*d))(o, 0, 2, 1, 3).reshape(B, S, D) @ wo

    def _B_ref(x, w_gate, w_up, w_down):
        g = torch.einsum("bsd,df->bsf", x, w_gate)
        u = torch.einsum("bsd,df->bsf", x, w_up)
        h = g * u
        return torch.einsum("bsf,fd->bsd", h, w_down)

    x = A_x
    xn = _layernorm(x, axis=-1)
    return x + _A_ref(xn, A_wqkv, A_wo) + _B_ref(xn, B_w_gate, B_w_up, B_w_down)
```

```python
from common import *
import gemm1 as G
L_KV = G.L_KV
S0 = 96
QF, QX = 24, 28
KF = 30
VF = 48
O = 64
AK, AKX, AV, MX, T0, T1, T2 = 1, 2, 3, 4, 8, 9, 10
NEG = 0xf149f2ca
LD = ""
def kv_dma(a, es, vl):
    e = a.e
    for i in es:
        e(f"s_add_u32 s{S_T0}, s{S_W}, {8*i}")
        if i == 7: e(f"s_min_u32 s{S_T0}, s{S_T0}, 59")
        e(f"s_lshl_b32 s{S_T0}, s{S_T0}, 10"); e(f"s_add_u32 m0, s{S_T0}, {L_KV}")
        e(f"s_add_i32 s{S_T0}, s{S_T0}, s70"); e(f"s_max_i32 s{S_T0}, s{S_T0}, 0"); e(f"s_add_u32 s{S_T0}, s{S_T0}, s69")
        a.vmop(f"buffer_load_dwordx4 v{vl}, {sr(S_WS,4)}, s{S_T0} offen lds{LD}", "kv")
def kv_setup(a):
    e = a.e
    e(f"s_mul_i32 s69, s{S_J}, 327680"); e(f"s_add_u32 s69, s69, {WS_KV}")
    e(f"s_mul_i32 s70, s{S_RB}, 20480"); e(f"s_sub_i32 s70, s70, 40960")
def q_load(a, t0, t1):
    e = a.e
    e(f"v_and_b32 v{t0}, 31, v0"); e(f"v_lshrrev_b32 v{t1}, 5, v0"); e(f"v_lshlrev_b32 v{t0}, 4, v{t0}")
    e(f"v_lshl_add_u32 v{AKX}, v{t1}, 3, v{t0}")
    e(f"v_lshl_add_u32 v{AK}, v{t1}, 9, v{t0}"); e(f"s_mul_i32 s{S_T3}, s{S_WN}, 1536"); e(f"v_add_u32 v{AK}, s{S_T3}, v{AK}")
    e(f"s_lshl_b32 s{S_T3}, s{S_RB}, 2"); e(f"s_add_u32 s{S_T3}, s{S_T3}, s{S_WM}"); e(f"s_mul_i32 s{S_T3}, s{S_T3}, 2560")
    e(f"s_mul_i32 s{S_T4}, s{S_J}, 163840"); e(f"s_add_u32 s{S_T3}, s{S_T3}, s{S_T4}")
    a.vmop(f"buffer_load_dwordx4 {vr(QF,4)}, v{AK}, {sr(S_WS,4)}, s{S_T3} offen{LD}", "q")
    a.vmop(f"buffer_load_dwordx2 {vr(QX,2)}, v{AKX}, {sr(S_WS,4)}, s{S_T3} offen offset:1024{LD}", "q")
def attn(a, kvwait=True, mid=None):
    e = a.e
    e(f"s_mul_i32 s{S_T3}, s{S_WM}, 5120"); e(f"s_add_u32 s{S_T3}, s{S_T3}, {L_KV}")
    e(f"v_add_u32 v{AK}, s{S_T3}, v{AK}"); e(f"v_add_u32 v{AKX}, s{S_T3}, v{AKX}")
    e(f"v_and_b32 v{T0}, 3, v0"); e(f"v_bfe_u32 v{T1}, v0, 2, 1"); e(f"v_lshl_add_u32 v{T2}, v{T1}, 3, v{T0}")
    e(f"v_bfe_u32 v{T1}, v0, 3, 1"); e(f"v_lshl_add_u32 v{T2}, v{T1}, 2, v{T2}")
    e(f"s_mul_i32 s{S_T4}, s{S_WN}, 24"); e(f"v_add_u32 v{T2}, s{S_T4}, v{T2}")
    e(f"s_lshl_b32 s{S_T4}, s{S_WN}, 2"); e(f"s_add_u32 s{S_T4}, s{S_T4}, 16"); e(f"v_add_u32 v{T0}, s{S_T4}, v{T0}")
    e(f"v_and_b32 v{T1}, 16, v0"); e(f"v_cmp_eq_u32 vcc, 0, v{T1}")
    e(f"v_lshrrev_b32 v{T1}, 5, v0"); e(f"v_mul_u32_u24 v{T1}, 640, v{T1}")
    e(f"v_cndmask_b32 v{T2}, v{T0}, v{T2}, vcc")
    e(f"v_lshl_add_u32 v{AV}, v{T2}, 4, v{T1}"); e(f"v_add_u32 v{AV}, s{S_T3}, v{AV}")
    for i in range(16): e(f"v_mov_b32 v{VF+i}, s{S_ONES}")
    e("s_mov_b32 s72, 0x000fffff"); e("s_mov_b32 s73, 0x000fffff")
    e(f"v_and_b32 v{T0}, 31, v0"); e(f"v_lshrrev_b32 v{T1}, 5, v0"); e(f"v_lshlrev_b32 v{T1}, 2, v{T1}"); e(f"v_sub_u32 v{T0}, v{T0}, v{T1}")
    e(f"v_mov_b32 v{T1}, {hex(NEG)}"); e(f"v_mov_b32 v{T2}, 0")
    for r in range(16):
        sp = ("vcc", "s[74:75]")[r & 1]
        e(f"v_cmp_gt_i32 {sp}, {8*(r//4)+r%4}, v{T0}")
        if r:
            pp = ("vcc", "s[74:75]")[(r-1) & 1]
            e(f"v_cndmask_b32 v{S0+r-1}, v{T1}, v{T2}, {pp}"); e(f"v_cndmask_b32 v{S0+128+r-1}, v{T2}, v{T1}, {pp}")
        else: a.nop(1)
    e(f"v_cndmask_b32 v{S0+15}, v{T1}, v{T2}, s[74:75]"); e(f"v_cndmask_b32 v{S0+128+15}, v{T2}, v{T1}, s[74:75]")
    e(f"s_sub_u32 s74, s{S_WN}, 1"); e("s_not_b32 s75, s74")
    if kvwait:
        a.vmall(); e("s_barrier")
    else:
        a.vmwait("q")
    def kread(b):
        k = KF + 6 * (b % 3)
        e(f"ds_read_b128 {vr(k,4)}, v{AK} offset:{b*5120}"); e(f"ds_read_b64 {vr(k+4,2)}, v{AKX} offset:{b*5120+1024}")
    def vread(f):
        e("s_mov_b64 exec, s[72:73]")
        for g in f: e(f"ds_read_b128 {vr(VF+4*(g%4),4)}, v{AV} offset:{(g//2)*5120+2560+(g%2)*1280}")
        e("s_mov_b64 exec, -1")
    kread(0); kread(1)
    e(f"v_cndmask_b32 v{QX}, v{T2}, v{QX}, s[74:75]"); e(f"v_cndmask_b32 v{QX+1}, v{T2}, v{QX+1}, s[74:75]")
    def mx(b):
        s = S0 + 16 * b
        for i in range(8):
            m = MX + (i & 1)
            e(f"v_max3_f32 v{m}, v{s+2*i}, v{s+2*i+1}, v{m}")
    e(f"v_mov_b32 v{MX}, v{T1}"); e(f"v_mov_b32 v{MX+1}, v{T1}")
    order = list(range(9))
    for b in order:
        if b + 2 < 9: kread(b + 2); a.lg(4)
        elif b + 1 < 9: a.lg(2)
        else: a.lg(0)
        k = KF + 6 * (b % 3); d = vr(S0 + 16 * b, 16)
        e(f"v_mfma_f32_32x32x16_bf16 {d}, {vr(k,4)}, {vr(QF,4)}, {d if b in (0,8) else '0'}")
        e(f"v_mfma_f32_32x32x8bf16_1k {d}, {vr(k+4,2)}, {vr(QX,2)}, {d}")
    vread([0, 1, 2, 3])
    done = a.newlab()
    e(f"s_lshl_b32 s{S_T3}, s{S_RB}, 2"); e(f"s_add_u32 s{S_T3}, s{S_T3}, s{S_WM}")
    e(f"s_cmp_ge_u32 s{S_T3}, 8"); e(f"s_cbranch_scc1 {done}")
    a.nop(16)
    for b in range(8):
        if b: e(f"s_cmp_ge_u32 s{S_T3}, {8-b}"); e(f"s_cbranch_scc1 {done}")
        for i in range(16): e(f"v_mov_b32 v{S0+16*b+i}, v{T1}")
    a.lab(done)
    if mid: mid()
    for b in range(8): mx(b)
    a.nop(4); mx(8)
    e(f"v_max_f32 v{MX}, v{MX}, v{MX+1}"); e(f"v_mov_b32 v{MX+1}, v{MX}"); a.nop(2)
    e(f"v_permlane32_swap_b32 v{MX}, v{MX+1}"); a.nop(1)
    e(f"v_max_f32 v{MX}, v{MX}, v{MX+1}")
    for g in range(18):
        s = S0 + 8 * g
        for i in range(4): e(f"v_pk_add_f32 {vr(s+2*i,2)}, {vr(s+2*i,2)}, {vr(MX,2)} op_sel_hi:[1,0] neg_lo:[0,1] neg_hi:[0,1]")
        for i in range(8): e(f"v_exp_f32 v{s+i}, v{s+i}")
        if g >= 1:
            p = g - 1
            if p + 3 < 18 and p >= 1: vread([p + 3])
            a.lg(min(3, 17 - p) if p >= 1 else 3)
            e(f"v_mfma_f32_32x32x16_bf16 {vr(O,16)}, {vr(VF+4*(p%4),4)}, {vr(S0+8*p,4)}, {vr(O,16) if p else '0'}")
        else: a.nop(1)
        for i in range(4): e(f"v_cvt_pk_bf16_f32 v{s+i}, v{s+2*i}, v{s+2*i+1}")
    a.lg(0); a.nop(1)
    e(f"v_mfma_f32_32x32x16_bf16 {vr(O,16)}, {vr(VF+4*(17%4),4)}, {vr(S0+8*17,4)}, {vr(O,16)}")
    e(f"v_bfe_u32 v{T0}, v0, 4, 1"); e(f"v_mul_u32_u24 v{T0}, 69632, v{T0}"); e(f"v_and_b32 v{T1}, 15, v0"); e(f"v_lshl_add_u32 v{T0}, v{T1}, 4, v{T0}")
    e(f"v_lshrrev_b32 v{T1}, 5, v0"); e(f"v_lshl_add_u32 v{T1}, v{T1}, 8, v{T0}")
    e(f"s_mul_i32 s{S_T3}, s{S_T3}, {2*69632}"); e(f"s_mul_i32 s{S_T4}, s{S_J}, 1280"); e(f"s_add_u32 s{S_T3}, s{S_T3}, s{S_T4}")
    e(f"s_add_u32 s{S_T3}, s{S_T3}, {WS_A2+192*256}")
    e(f"s_mul_i32 s{S_T4}, s{S_WN}, 768"); e(f"s_add_u32 s{S_T4}, s{S_T4}, s{S_T3}")
    e(f"s_lshl_b32 s{S_T5}, s{S_WN}, 3"); e(f"s_add_u32 s{S_T3}, s{S_T3}, s{S_T5}")
    a.nop(6)
    e(f"v_rcp_f32 v{MX}, v{O+12}"); a.nop(1)
    for i in range(6): e(f"v_pk_mul_f32 {vr(O+2*i,2)}, {vr(O+2*i,2)}, {vr(MX,2)} op_sel_hi:[1,0]")
    for i in range(6): e(f"v_cvt_pk_bf16_f32 v{O+i}, v{O+2*i}, v{O+2*i+1}")
    a.vmop(f"buffer_store_dwordx4 {vr(O,4)}, v{T1}, {sr(S_WS,4)}, s{S_T4} offen{G.SC}", "o")
    e("s_mov_b32 exec_hi, 0")
    a.vmop(f"buffer_store_dwordx2 {vr(O+4,2)}, v{T0}, {sr(S_WS,4)}, s{S_T3} offen offset:512{G.SC}", "o")
    e("s_mov_b64 exec, -1")
```

```python
NAME = "parallel_sum__sliding_block__glu_gated_bilinear__prompt"
WS_Q = 0; WS_KV = 0x280000; WS_A2 = 0x780000; WS_B2 = 0x1000000
WS_END = 0x2000000
class Asm:
    def __init__(s):
        s.L = []; s.vm = []; s.n = 0
    def e(s, t): s.L.append("  " + t)
    def lab(s, t): s.L.append(t + ":")
    def newlab(s, p="L"):
        s.n += 1; return f"{p}_{s.n}"
    def vmop(s, t, tag): s.e(t); s.vm.append(tag)
    def vmwait(s, tag, lgkm=None):
        idx = max(i for i, x in enumerate(s.vm) if x == tag)
        n = len(s.vm) - 1 - idx
        assert n <= 63
        s.e(f"s_waitcnt vmcnt({n})" + (f" lgkmcnt({lgkm})" if lgkm is not None else ""))
        s.vm = s.vm[idx+1:]
    def vmall(s):
        s.e("s_waitcnt vmcnt(0)"); s.vm = []
    def lg(s, n=0): s.e(f"s_waitcnt lgkmcnt({n})")
    def nop(s, n):
        while n > 0:
            k = min(n, 8); s.e(f"s_nop {k-1}"); n -= k
def vr(a, n): return f"v[{a}:{a+n-1}]" if n > 1 else f"v{a}"
def sr(a, n): return f"s[{a}:{a+n-1}]" if n > 1 else f"s{a}"
S_X, S_WQ, S_GU, S_R, S_WS, S_OUT, S_DBG = 4, 8, 12, 16, 20, 24, 28
S_RB, S_J, S_W, S_WM, S_WN, S_ONES = 32, 33, 34, 35, 36, 37
S_T0, S_T1, S_T2, S_T3, S_T4, S_T5 = 38, 39, 40, 41, 42, 43
S_RB2, S_CB = 44, 45
S_M0X, S_M0G = 46, 47
def srd(a, d, lo, size):
    a.e(f"s_mov_b32 s{d}, s{lo}"); a.e(f"s_mov_b32 s{d+1}, s{lo+1}")
    a.e(f"s_mov_b32 s{d+2}, {size}"); a.e(f"s_mov_b32 s{d+3}, 0x20000")
def setup(a, endlab):
    a.e("s_cmp_ge_u32 s2, 256"); a.e(f"s_cbranch_scc1 {endlab}")
    a.e("s_load_dwordx16 s[48:63], s[0:1], 0")
    a.e("s_load_dwordx4 s[64:67], s[0:1], 64")
    a.e("v_lshrrev_b32 v1, 6, v0")
    a.e("v_and_b32 v0, 63, v0")
    a.e(f"v_readfirstlane_b32 s{S_W}, v1")
    a.e(f"s_and_b32 s{S_T0}, s2, 7"); a.e(f"s_lshr_b32 s{S_T1}, s2, 3")
    a.e(f"s_and_b32 s{S_T2}, s{S_T1}, 7"); a.e(f"s_lshr_b32 s{S_T3}, s{S_T1}, 3")
    a.e(f"s_and_b32 s{S_RB}, s{S_T0}, 1"); a.e(f"s_lshl_b32 s{S_RB}, s{S_RB}, 3"); a.e(f"s_add_u32 s{S_RB}, s{S_RB}, s{S_T2}")
    a.e(f"s_lshr_b32 s{S_J}, s{S_T0}, 1"); a.e(f"s_lshl_b32 s{S_J}, s{S_J}, 2"); a.e(f"s_add_u32 s{S_J}, s{S_J}, s{S_T3}")
    a.e(f"s_and_b32 s{S_RB2}, s{S_T0}, 3"); a.e(f"s_lshl_b32 s{S_RB2}, s{S_RB2}, 3"); a.e(f"s_add_u32 s{S_RB2}, s{S_RB2}, s{S_T2}")
    a.e(f"s_lshr_b32 s{S_CB}, s{S_T0}, 2"); a.e(f"s_lshl_b32 s{S_CB}, s{S_CB}, 2"); a.e(f"s_add_u32 s{S_CB}, s{S_CB}, s{S_T3}")
    a.e(f"s_and_b32 s{S_WM}, s{S_W}, 3"); a.e(f"s_lshr_b32 s{S_WN}, s{S_W}, 2")
    a.e(f"s_mov_b32 s{S_ONES}, 0x3f803f80")
    a.e(f"s_lshl_b32 s{S_M0X}, s{S_W}, 11")
    a.e(f"s_mul_i32 s{S_M0G}, s{S_W}, 3072")
    a.e("s_waitcnt lgkmcnt(0)")
    srd(a, S_X, 48, 2048*1280); srd(a, S_WQ, 50, 640*3840); srd(a, S_WS, 66, WS_END)
    srd(a, S_OUT, 62, 2048*1280); srd(a, S_DBG, 64, 256)
    a.e(f"s_cmp_eq_u32 s{S_WN}, 0")
    a.e(f"s_cselect_b32 s{S_GU}, s56, s58"); a.e(f"s_cselect_b32 s{S_GU+1}, s57, s59")
    a.e(f"s_mov_b32 s{S_GU+2}, {640*3072}"); a.e(f"s_mov_b32 s{S_GU+3}, 0x20000")
    a.e("s_cmp_lt_u32 s2, 120")
    a.e(f"s_cselect_b32 s{S_R}, s60, s52"); a.e(f"s_cselect_b32 s{S_R+1}, s61, s53")
    a.e(f"s_cselect_b32 s{S_R+2}, {1536*1280}, {0}"); a.e(f"s_cselect_b32 s{S_T0}, 0, {640*1280}")
    a.e(f"s_add_u32 s{S_R+2}, s{S_R+2}, s{S_T0}"); a.e(f"s_mov_b32 s{S_R+3}, 0x20000")
def kernel_hdr(lab):
    return f".globl {lab}\n.p2align 8\n.type {lab},@function\n{lab}:\n"
def kernel_desc(lab, vg, sg=96):
    return f""".p2align 6
.amdhsa_kernel {lab}
  .amdhsa_next_free_vgpr {vg}
  .amdhsa_next_free_sgpr {sg}
  .amdhsa_accum_offset {(vg+3)//4*4}
  .amdhsa_group_segment_fixed_size 0
  .amdhsa_kernarg_size 80
  .amdhsa_user_sgpr_count 2
  .amdhsa_user_sgpr_kernarg_segment_ptr 1
  .amdhsa_system_sgpr_workgroup_id_x 1
.end_amdhsa_kernel
"""
```

```python
from common import *
VX0, VX1, VW, VG, RDX, RDXT, RDW, RDG, SUM, SSQ, CS, T0, M, R, T1, T2 = 1, 2, 3, 4, 7, 8, 9, 11, 14, 15, 16, 19, 20, 21, 22, 23
WB, ACC, X = 24, 48, 96
L_CSQ, L_CSG, L_SUM, L_SSQ, L_R, L_RM = 0, 512, 1280, 1792, 2304, 2816
L_KV = 4096
L_RL = 131072
SC = ""
def pslot(s): return 65536 + 24576 * ((s - 10) % 4)

def addr_setup(a):
    e = a.e
    e(f"v_lshrrev_b32 v{T0}, 3, v0"); e(f"v_lshrrev_b32 v{T1}, 4, v0"); e(f"v_and_b32 v{T2}, 7, v0")
    e(f"s_lshl_b32 s{S_T0}, s{S_RB}, 7"); e(f"s_lshl_b32 s{S_T1}, s{S_W}, 4"); e(f"s_add_u32 s{S_T0}, s{S_T0}, s{S_T1}")
    e(f"v_add_u32 v{T0}, s{S_T0}, v{T0}"); e(f"v_mul_u32_u24 v{T0}, 1280, v{T0}")
    e(f"v_xor_b32 v{T2}, v{T2}, v{T1}")
    e(f"v_lshl_add_u32 v{VX0}, v{T2}, 4, v{T0}")
    e(f"v_xor_b32 v{T2}, 4, v{T2}"); e(f"v_add_u32 v{T0}, {10240-1024}, v{T0}")
    e(f"v_lshl_add_u32 v{VX1}, v{T2}, 4, v{T0}")
    e(f"s_lshl_b32 s{S_T1}, s{S_W}, 3"); e(f"v_add_u32 v{T0}, s{S_T1}, v{T1}")
    e(f"v_mul_u32_u24 v{VW}, 3840, v{T0}")
    e(f"v_bfe_u32 v{T2}, v0, 2, 2"); e(f"v_xor_b32 v{T2}, v{T2}, v{T1}"); e(f"v_lshl_add_u32 v{VW}, v{T2}, 6, v{VW}")
    e(f"v_and_b32 v{T2}, 3, v0"); e(f"v_lshl_add_u32 v{VW}, v{T2}, 4, v{VW}")
    e(f"s_min_u32 s{S_T0}, s{S_J}, 14"); e(f"s_lshl_b32 s{S_T0}, s{S_T0}, 8"); e(f"v_add_u32 v{VW}, s{S_T0}, v{VW}")
def addr_setup2(a):
    e = a.e
    RL = ACC + 32
    e(f"s_mul_i32 s{S_T0}, s2, 205"); e(f"s_lshr_b32 s{S_T0}, s{S_T0}, 10")
    e(f"s_mul_i32 s{S_T1}, s{S_T0}, 5"); e(f"s_sub_u32 s{S_T1}, s2, s{S_T1}")
    e(f"s_sub_u32 s{S_T2}, s{S_T0}, 24"); e(f"s_cmp_lt_u32 s{S_T0}, 24"); e(f"s_cselect_b32 s{S_T2}, s{S_T0}, s{S_T2}")
    e(f"s_mul_i32 s{S_T2}, s{S_T2}, {64*1280}"); e(f"s_lshl_b32 s{S_T3}, s{S_T1}, 8"); e(f"s_add_u32 s{S_T2}, s{S_T2}, s{S_T3}")
    e(f"v_mul_u32_u24 v{RL}, 1280, v{T0}"); e(f"v_and_b32 v{T2}, 15, v0"); e(f"v_lshl_add_u32 v{RL}, v{T2}, 4, v{RL}")
    sk = a.newlab()
    e("s_cmp_ge_u32 s2, 170"); e(f"s_cbranch_scc1 {sk}")
    e(f"s_add_u32 m0, s{S_M0X}, {L_RL}"); e(f"s_add_u32 s{S_T3}, s{S_T2}, {4*1280-1024}")
    e(f"buffer_load_dwordx4 v{RL}, {sr(S_R,4)}, s{S_T2} offen lds")
    e(f"buffer_load_dwordx4 v{RL}, {sr(S_R,4)}, s{S_T3} offen offset:1024 lds")
    a.lab(sk)
    e(f"s_lshl_b32 s{S_T1}, s{S_T1}, 3"); e(f"s_add_u32 s{S_T1}, s{S_T1}, s{S_W}")
    e(f"s_mul_i32 s{S_T2}, s{S_T1}, 205"); e(f"s_lshr_b32 s{S_T2}, s{S_T2}, 10")
    e(f"s_mul_i32 s{S_T2}, s{S_T2}, {340-5}"); e(f"s_add_u32 s{S_T2}, s{S_T2}, s{S_T1}")
    e(f"s_mul_i32 s{S_T0}, s{S_T0}, 10"); e(f"s_add_u32 s{S_T2}, s{S_T2}, s{S_T0}")
    e(f"s_lshl_b32 s{S_T2}, s{S_T2}, 10"); e(f"s_add_u32 s68, s{S_T2}, {WS_B2}")
def addr_setup3(a):
    e = a.e
    for i in range(3):
        e(f"v_add_u32 v{T0}, {64*i}, v0"); e(f"v_mul_u32_u24 v{T1}, 171, v{T0}"); e(f"v_lshrrev_b32 v{T1}, 11, v{T1}")
        e(f"v_mul_u32_u24 v{T2}, 12, v{T1}"); e(f"v_sub_u32 v{T0}, v{T0}, v{T2}")
        e(f"s_lshl_b32 s{S_T0}, s{S_WN}, 1"); e(f"v_xor_b32 v{T0}, s{S_T0}, v{T0}")
        e(f"v_mul_u32_u24 v{T1}, 3072, v{T1}"); e(f"v_lshl_add_u32 v{VG+i}, v{T0}, 4, v{T1}")
        e(f"s_mul_i32 s{S_T0}, s{S_WM}, {16*3072}"); e(f"s_mul_i32 s{S_T1}, s{S_J}, 192"); e(f"s_add_u32 s{S_T0}, s{S_T0}, s{S_T1}")
        e(f"s_sub_u32 s{S_T0}, s{S_T0}, {1024*i}")
        e(f"v_add_u32 v{VG+i}, s{S_T0}, v{VG+i}")
    e(f"v_and_b32 v{T0}, 31, v0"); e(f"v_lshrrev_b32 v{T1}, 5, v0"); e(f"v_bfe_u32 v{T2}, v0, 1, 3")
    e(f"v_xor_b32 v{T2}, v{T2}, v{T1}"); e(f"v_lshlrev_b32 v{T2}, 4, v{T2}"); e(f"v_lshl_add_u32 v{RDX}, v{T0}, 7, v{T2}")
    e(f"s_lshl_b32 s{S_T0}, s{S_WM}, 12"); e(f"v_add_u32 v{RDX}, s{S_T0}, v{RDX}")
    e(f"v_bfe_u32 v{T0}, v0, 2, 2")
    e(f"v_lshlrev_b32 v{RDW}, 11, v{T1}"); e(f"v_lshl_add_u32 v{RDW}, v{T0}, 8, v{RDW}")
    e(f"v_and_b32 v{T2}, 1, v0"); e(f"v_lshl_add_u32 v{RDW}, v{T2}, 5, v{RDW}")
    e(f"v_and_b32 v{T2}, 16, v0"); e(f"v_add_u32 v{RDW}, v{T2}, v{RDW}")
    e(f"v_and_b32 v{T2}, 2, v0"); e(f"v_lshl_add_u32 v{RDW}, v{T2}, 2, v{RDW}")
    e(f"s_lshl_b32 s{S_T0}, s{S_WN}, 1"); e(f"v_xor_b32 v{T2}, s{S_T0}, v{T0}")
    e(f"v_lshl_add_u32 v{RDW}, v{T2}, 6, v{RDW}"); e(f"v_xor_b32 v{RDW+1}, 64, v{RDW}")
    e(f"v_lshl_add_u32 v{T0}, v{T1}, 3, v{T0}"); e(f"v_mul_u32_u24 v{T0}, 192, v{T0}")
    e(f"v_bfe_u32 v{T1}, v0, 4, 1"); e(f"v_mul_u32_u24 v{T2}, 12288, v{T1}"); e(f"v_add_u32 v{T0}, v{T0}, v{T2}")
    e(f"v_and_b32 v{T2}, 1, v0"); e(f"v_lshl_add_u32 v{T0}, v{T2}, 4, v{T0}")
    e(f"v_and_b32 v{T2}, 2, v0"); e(f"v_lshl_add_u32 v{T0}, v{T2}, 2, v{T0}")
    e(f"v_add_u32 v{T0}, 0x10000, v{T0}")
    e(f"s_mul_i32 s{S_T0}, s{S_WN}, 3")
    for i in range(3):
        e(f"s_add_u32 s{S_T1}, s{S_T0}, {i}"); e(f"v_xor_b32 v{T2}, s{S_T1}, v{T1}")
        e(f"v_lshl_add_u32 v{RDG+i}, v{T2}, 5, v{T0}")
    for r in (SUM, SSQ, CS, CS+1, CS+2): e(f"v_mov_b32 v{r}, 0")

def dma(a, s):
    e = a.e
    if s < 10:
        b = (s % 4) * 32768
        e(f"s_add_u32 m0, s{S_M0X}, {b}"); e(f"s_movk_i32 s{S_T0}, {s*128}")
        a.vmop(f"buffer_load_dwordx4 v{VX0}, {sr(S_X,4)}, s{S_T0} offen lds", s)
        a.vmop(f"buffer_load_dwordx4 v{VX1}, {sr(S_X,4)}, s{S_T0} offen offset:1024 lds", s)
        e(f"s_add_u32 m0, s{S_M0X}, {b+16384}"); e(f"s_mov_b32 s{S_T1}, {s*245760}"); e(f"s_mov_b32 s{S_T2}, {s*245760+14336}")
        a.vmop(f"buffer_load_dwordx4 v{VW}, {sr(S_WQ,4)}, s{S_T1} offen lds", s)
        a.vmop(f"buffer_load_dwordx4 v{VW}, {sr(S_WQ,4)}, s{S_T2} offen offset:1024 lds", s)
    else:
        e(f"s_add_u32 m0, s{S_M0G}, {pslot(s)}"); e(f"s_mov_b32 s{S_T0}, {(s-10)*64*3072}")
        for i in range(3):
            a.vmop(f"buffer_load_dwordx4 v{VG+i}, {sr(S_GU,4)}, s{S_T0} offen" + (f" offset:{1024*i}" if i else "") + " lds", s)

def reads(a, t):
    e = a.e; s, kk = t // 4, t % 4; wb = WB + 12 * (t & 1)
    if t < 40:
        if kk == 0 and s > 0 and s % 2 == 0:
            e(f"v_xor_b32 v{RDW}, 0x10000, v{RDW}"); e(f"v_xor_b32 v{RDW+1}, 0x10000, v{RDW+1}")
        c = kk * 32 + (s % 4) * 32768
        if c: e(f"v_xor_b32 v{RDXT}, {c}, v{RDX}")
        for ti in range(2):
            for h in range(2):
                e(f"ds_read_b64_tr_b16 {vr(wb+4*ti+2*h,2)}, v{RDW+ti} offset:{(s%2)*32768+16384+kk*4096+h*1024}")
        e(f"ds_read_b128 {vr(X+4*t,4)}, v{RDXT if c else RDX}")
    else:
        p = (s - 10) % 4
        if kk == 0 and p == 2:
            for i in range(3): e(f"v_add_u32 v{RDG+i}, 49152, v{RDG+i}")
        if kk == 0 and p == 0 and s > 10:
            for i in range(3): e(f"v_subrev_u32 v{RDG+i}, 49152, v{RDG+i}")
        for ti in range(3):
            for h in range(2):
                e(f"ds_read_b64_tr_b16 {vr(wb+4*ti+2*h,2)}, v{RDG+ti} offset:{(p%2)*24576+kk*3072+h*768}")

def relayout(a):
    e = a.e; RL = ACC + 32
    sk = a.newlab()
    e("s_cmp_ge_u32 s2, 170"); e(f"s_cbranch_scc1 {sk}")
    e(f"v_lshrrev_b32 v{T0}, 4, v0"); e(f"v_bfe_u32 v{T1}, v0, 2, 2"); e(f"v_lshl_add_u32 v{T0}, v{T0}, 3, v{T1}")
    e(f"v_and_b32 v{T1}, 3, v0"); e(f"v_lshlrev_b32 v{T1}, 3, v{T1}"); e(f"v_lshl_add_u32 v{T0}, v{T0}, 8, v{T1}")
    e(f"s_lshl_b32 s{S_T0}, s{S_W}, 5"); e(f"s_add_u32 s{S_T0}, s{S_T0}, {L_RL}"); e(f"v_add_u32 v{T0}, s{S_T0}, v{T0}")
    for k2 in range(2):
        for h in range(2):
            e(f"ds_read_b64_tr_b16 {vr(RL+4*k2+2*h,2)}, v{T0} offset:{k2*8192+h*1024}")
    e(f"v_lshlrev_b32 v{T1}, 4, v0"); e(f"s_add_u32 s{S_T0}, s68, 5120")
    a.lg(0)
    e(f"buffer_store_dwordx4 {vr(RL,4)}, v{T1}, {sr(S_WS,4)}, s68 offen{SC}")
    e(f"buffer_store_dwordx4 {vr(RL+4,4)}, v{T1}, {sr(S_WS,4)}, s{S_T0} offen{SC}")
    a.lab(sk)

def step(a, t, vvar, hook=None):
    e = a.e; s, kk = t // 4, t % 4; wb = WB + 12 * (t & 1); nt = 2 if t < 40 else 3; xs = X + 4 * (t % 40)
    if kk == 3 and s < 19:
        a.vmwait(s + 1, lgkm=0); e("s_barrier")
    else:
        a.lg(0)
    if t < 79: reads(a, t + 1)
    first = (t % 40 == 0)
    def mf(ti):
        d = vr(ACC + 16 * ti, 16); w = vr(wb + 4 * ti, 4); x = vr(xs, 4)
        p, q = (x, w) if vvar else (w, x)
        e(f"v_mfma_f32_32x32x16_bf16 {d}, {p}, {q}, {'0' if first else d}")
    mf(0)
    if kk == 3 and s + 4 < 20: dma(a, s + 4)
    if t < 40:
        sk = a.newlab()
        e(f"s_cmp_lg_u32 s{S_WN}, {t&1}"); e(f"s_cbranch_scc1 {sk}")
        for i in range(4):
            e(f"v_dot2c_f32_bf16 v{SUM}, s{S_ONES}, v{xs+i}"); e(f"v_dot2c_f32_bf16 v{SSQ}, v{xs+i}, v{xs+i}")
        a.lab(sk)
    mf(1)
    sk = a.newlab()
    e(f"s_cmp_lg_u32 s{S_WM}, {kk}"); e(f"s_cbranch_scc1 {sk}")
    for i in range(4):
        for ti in range(nt): e(f"v_dot2c_f32_bf16 v{CS+ti}, s{S_ONES}, v{wb+4*ti+i}")
    a.lab(sk)
    if nt == 3: mf(2)
    if t == 35:
        e(f"v_lshlrev_b32 v{T0}, 3, v0"); e(f"s_lshl_b32 s{S_T0}, s{S_W}, 9"); e(f"v_add_u32 v{T0}, s{S_T0}, v{T0}")
        e(f"v_mov_b32 v{T1}, 0"); e(f"v_mov_b32 v{T2}, 0"); e(f"ds_write_b64 v{T0}, {vr(T1,2)}")
    if t == 9: relayout(a)
    if hook: hook(t)

def lcol(a, d, tmp):
    e = a.e
    e(f"v_and_b32 v{d}, 3, v0"); e(f"v_bfe_u32 v{tmp}, v0, 2, 1"); e(f"v_lshl_add_u32 v{d}, v{tmp}, 4, v{d}")
    e(f"v_bfe_u32 v{tmp}, v0, 3, 2"); e(f"v_lshl_add_u32 v{d}, v{tmp}, 2, v{d}")
def bf16r(a, r):
    a.e(f"v_cvt_pk_bf16_f32 v{r}, v{r}, v{r}"); a.e(f"v_lshlrev_b32 v{r}, 16, v{r}")

def epi1(a, vvar):
    e = a.e; C = ACC + 32
    lcol(a, T0, T1)
    e(f"s_lshl_b32 s{S_T0}, s{S_WN}, 8"); e(f"v_lshl_add_u32 v{T1}, v{T0}, 2, s{S_T0}")
    e(f"ds_add_f32 v{T1}, v{CS} offset:{L_CSQ}"); e(f"ds_add_f32 v{T1}, v{CS+1} offset:{L_CSQ+128}")
    e(f"v_and_b32 v{T2}, 31, v0"); e(f"s_lshl_b32 s{S_T1}, s{S_WM}, 7"); e(f"v_lshl_add_u32 v{T2}, v{T2}, 2, s{S_T1}")
    e(f"ds_add_f32 v{T2}, v{SUM} offset:{L_SUM}"); e(f"ds_add_f32 v{T2}, v{SSQ} offset:{L_SSQ}")
    a.lg(0); e("s_barrier")
    e(f"ds_read_b32 v{M}, v{T2} offset:{L_SUM}"); e(f"ds_read_b32 v{R}, v{T2} offset:{L_SSQ}")
    if vvar:
        e(f"ds_read_b32 v{CS}, v{T1} offset:{L_CSQ}"); e(f"ds_read_b32 v{SUM}, v{T1} offset:{L_CSQ+128}")
        a.lg(2)
    else:
        e(f"v_lshrrev_b32 v{T1}, 5, v0"); e(f"v_lshl_add_u32 v{T1}, v{T1}, 6, s{S_T0}")
        for q in range(4): e(f"ds_read_b128 {vr(C+4*q,4)}, v{T1} offset:{L_CSQ+16*q}")
        a.lg(4)
    e(f"v_mul_f32 v{M}, {hex(0x3acccccd)}, v{M}"); e(f"v_mul_f32 v{R}, {hex(0x3acccccd)}, v{R}")
    e(f"v_fma_f32 v{R}, -v{M}, v{M}, v{R}"); e(f"v_max_f32 v{R}, 0, v{R}")
    bf16r(a, M); bf16r(a, R)
    e(f"v_add_f32 v{R}, {hex(0x3727c5ac)}, v{R}"); bf16r(a, R)
    e(f"v_sqrt_f32 v{R}, v{R}"); e("s_nop 0"); bf16r(a, R)
    e(f"v_rcp_f32 v{R}, v{R}"); e(f"v_sub_f32 v{M}, 0, v{M}")
    if vvar:
        e(f"v_mul_f32 v{SSQ}, v{M}, v{R}")
        e(f"ds_write_b32 v{T2}, v{R} offset:{L_R}"); e(f"ds_write_b32 v{T2}, v{SSQ} offset:{L_RM}")
        e(f"v_lshrrev_b32 v{T1}, 5, v0"); e(f"v_lshl_add_u32 v{T2}, v{T1}, 4, s{S_T1}")
        e(f"s_sub_u32 s{S_T2}, s{S_J}, 10"); e(f"s_lshl_b32 s{S_T2}, s{S_T2}, 7"); e(f"s_lshl_b32 s{S_T3}, s{S_WN}, 6"); e(f"s_add_u32 s{S_T2}, s{S_T2}, s{S_T3}")
        e(f"s_lshl_b32 s{S_T3}, s{S_RB}, 2"); e(f"s_add_u32 s{S_T3}, s{S_T3}, s{S_WM}"); e(f"s_mul_i32 s{S_T3}, s{S_T3}, 5120")
        e(f"s_add_u32 s{S_T3}, s{S_T3}, {WS_KV+2560}")
        e(f"s_cmp_eq_u32 s{S_J}, 15"); e(f"s_cselect_b32 s{S_T4}, 0x1000000, 0"); e(f"s_add_u32 s{S_T3}, s{S_T3}, s{S_T4}")
        e(f"v_mul_u32_u24 v{T1}, 640, v{T1}")
        e(f"s_mov_b32 s{S_T4}, {327680-640}")
        AD = (RDX, RDXT)
        for ti in range(2):
            e(f"v_add_u32 v{AD[ti]}, s{S_T2}, v{T0}")
            if ti: e(f"v_add_u32 v{AD[ti]}, 32, v{AD[ti]}")
            e(f"v_mul_u32_u24 v{RDW}, 1639, v{AD[ti]}"); e(f"v_lshrrev_b32 v{RDW}, 16, v{RDW}")
            e(f"v_lshl_add_u32 v{AD[ti]}, v{AD[ti]}, 4, v{T1}"); e(f"v_mad_u32_u24 v{AD[ti]}, v{RDW}, s{S_T4}, v{AD[ti]}")
        CSP = (CS, SUM)
        for m in range(2):
            a.lg(0)
            for q in range(2):
                e(f"ds_read_b128 {vr(C+4*q,4)}, v{T2} offset:{L_R+(2*m+q)*32}"); e(f"ds_read_b128 {vr(C+8+4*q,4)}, v{T2} offset:{L_RM+(2*m+q)*32}")
            a.lg(0)
            for ti in range(2):
                b = ACC + 16 * ti + 8 * m
                for i in range(4): e(f"v_pk_mul_f32 {vr(b+2*i,2)}, {vr(b+2*i,2)}, {vr(C+2*i,2)}")
                for i in range(4): e(f"v_pk_fma_f32 {vr(b+2*i,2)}, {vr(C+8+2*i,2)}, {vr(CSP[ti],2)}, {vr(b+2*i,2)} op_sel_hi:[1,0,1]")
                for i in range(4): e(f"v_cvt_pk_bf16_f32 v{b+i}, v{b+2*i}, v{b+2*i+1}")
                a.vmop(f"buffer_store_dwordx4 {vr(b,4)}, v{AD[ti]}, {sr(S_WS,4)}, s{S_T3} offen offset:{1280*m}{SC}", "qkv")
    else:
        e(f"s_cmp_lt_u32 s{S_J}, 5")
        e(f"s_cselect_b32 s{S_T2}, {hex(0x3ea52b5c)}, 1.0")
        e(f"s_cselect_b32 s{S_T3}, 0, 5"); e(f"s_cselect_b32 s{S_T4}, 1, 2"); e(f"s_cselect_b32 s{S_T5}, 0, {WS_KV}")
        e(f"v_mul_f32 v{SUM}, s{S_T2}, v{R}")
        e(f"s_sub_u32 s{S_T3}, s{S_J}, s{S_T3}"); e(f"s_lshl_b32 s{S_T3}, s{S_T3}, 4"); e(f"s_lshl_b32 s{S_T2}, s{S_WN}, 3"); e(f"s_add_u32 s{S_T3}, s{S_T3}, s{S_T2}")
        e(f"s_lshl_b32 s{S_T2}, s{S_RB}, 2"); e(f"s_add_u32 s{S_T2}, s{S_T2}, s{S_WM}"); e(f"s_mul_i32 s{S_T2}, s{S_T2}, 2560")
        e(f"s_mul_i32 s{S_T2}, s{S_T2}, s{S_T4}"); e(f"s_add_u32 s{S_T5}, s{S_T5}, s{S_T2}")
        e(f"s_mul_i32 s{S_T4}, s{S_T4}, 163840"); e(f"s_sub_u32 s{S_T4}, s{S_T4}, 2560")
        e(f"v_lshrrev_b32 v{T0}, 5, v0"); e(f"v_lshl_add_u32 v{T0}, v{T0}, 1, s{S_T3}")
        e(f"v_and_b32 v{T2}, 31, v0"); e(f"v_lshlrev_b32 v{T2}, 4, v{T2}")
        for ti in range(2):
            b = ACC + 16 * ti
            a.lg(0)
            for i in range(8): e(f"v_pk_fma_f32 {vr(b+2*i,2)}, {vr(C+2*i,2)}, {vr(M,2)}, {vr(b+2*i,2)} op_sel_hi:[1,0,1]")
            if ti == 0:
                for q in range(4): e(f"ds_read_b128 {vr(C+4*q,4)}, v{T1} offset:{L_CSQ+128+16*q}")
            for i in range(8): e(f"v_pk_mul_f32 {vr(b+2*i,2)}, {vr(b+2*i,2)}, {vr(SUM,2)} op_sel_hi:[1,0]")
            for i in range(8): e(f"v_cvt_pk_bf16_f32 v{b+i}, v{b+2*i}, v{b+2*i+1}")
            for h in range(2):
                ad = (RDX, RDXT)[h]
                e(f"v_add_u32 v{ad}, {4*ti+h}, v{T0}"); e(f"v_mul_u32_u24 v{RDW}, 205, v{ad}"); e(f"v_lshrrev_b32 v{RDW}, 10, v{RDW}")
                e(f"v_lshl_add_u32 v{ad}, v{ad}, 9, v{T2}"); e(f"v_mad_u32_u24 v{ad}, v{RDW}, s{S_T4}, v{ad}")
                a.vmop(f"buffer_store_dwordx4 {vr(b+4*h,4)}, v{ad}, {sr(S_WS,4)}, s{S_T5} offen{SC}", "qkv")
    for r in (CS, CS+1, CS+2): e(f"v_mov_b32 v{r}, 0")
    a.nop(2)

def epi2(a, pre=None):
    e = a.e; C = X
    lcol(a, T0, T1)
    e(f"s_mul_i32 s{S_T0}, s{S_WN}, 384"); e(f"v_lshl_add_u32 v{T1}, v{T0}, 2, s{S_T0}")
    for ti in range(3): e(f"ds_add_f32 v{T1}, v{CS+ti} offset:{L_CSG+128*ti}")
    e(f"v_mul_f32 v{SUM}, v{R}, v{R}")
    e(f"v_lshrrev_b32 v{T0}, 5, v0"); e(f"v_lshl_add_u32 v{T1}, v{T0}, 6, s{S_T0}")
    e(f"v_bfe_u32 v{T2}, v0, 4, 1"); e(f"v_mul_u32_u24 v{T2}, 69632, v{T2}"); e(f"v_lshl_add_u32 v{T2}, v{T0}, 8, v{T2}")
    e(f"v_and_b32 v{T0}, 15, v0"); e(f"v_lshl_add_u32 v{T2}, v{T0}, 4, v{T2}")
    e(f"s_lshl_b32 s{S_T1}, s{S_RB}, 2"); e(f"s_add_u32 s{S_T1}, s{S_T1}, s{S_WM}"); e(f"s_mul_i32 s{S_T1}, s{S_T1}, {2*69632}")
    e(f"s_lshl_b32 s{S_T2}, s{S_J}, 1"); e(f"s_add_u32 s{S_T2}, s{S_T2}, s{S_WN}"); e(f"s_mul_i32 s{S_T2}, s{S_T2}, 1536")
    e(f"s_add_u32 s{S_T1}, s{S_T1}, s{S_T2}"); e(f"s_add_u32 s{S_T1}, s{S_T1}, {WS_A2}")
    if pre: pre()
    else: a.lg(0)
    e("s_barrier")
    for ti in range(3):
        for q in range(4): e(f"ds_read_b128 {vr(C+16*ti+4*q,4)}, v{T1} offset:{L_CSG+128*ti+16*q}")
    for ti in range(3):
        b = ACC + 16 * ti
        a.lg(8 - 4 * ti)
        for i in range(8): e(f"v_pk_fma_f32 {vr(b+2*i,2)}, {vr(C+16*ti+2*i,2)}, {vr(M,2)}, {vr(b+2*i,2)} op_sel_hi:[1,0,1]")
        for i in range(4): e(f"v_pk_mul_f32 {vr(b+2*i,2)}, {vr(b+2*i,2)}, {vr(SUM,2)} op_sel_hi:[1,0]")
        for i in range(4): e(f"v_pk_mul_f32 {vr(b+2*i,2)}, {vr(b+2*i,2)}, {vr(b+8+2*i,2)}")
        for i in range(4): e(f"v_cvt_pk_bf16_f32 v{b+i}, v{b+2*i}, v{b+2*i+1}")
        a.vmop(f"buffer_store_dwordx4 {vr(b,4)}, v{T2}, {sr(S_WS,4)}, s{S_T1} offen offset:{512*ti}{SC}", "h")

def gemm1(a, hook2=None, after1=None, pre2=None):
    e = a.e
    addr_setup(a); addr_setup2(a)
    for s in range(4): dma(a, s)
    addr_setup3(a)
    a.vmwait(0); e("s_barrier"); reads(a, 0)
    lv, lj = a.newlab("LV"), a.newlab("LJ")
    e(f"s_cmp_ge_u32 s{S_J}, 10"); e(f"s_cbranch_scc1 {lv}")
    vm0 = list(a.vm)
    for t in range(40): step(a, t, False)
    epi1(a, False)
    e(f"s_branch {lj}")
    a.lab(lv); a.vm = list(vm0)
    for t in range(40): step(a, t, True)
    epi1(a, True)
    a.lab(lj)
    if after1: after1()
    for t in range(40, 80): step(a, t, False, hook2)
    epi2(a, pre2)
```

```python
from common import *
VA, VB, XR, AO, T0, T1 = 1, 5, 8, 14, 17, 18
ACC = 20
BUF = 100
LD = ""
def setup2(a):
    e = a.e
    e(f"v_lshlrev_b32 v{T0}, 4, v0")
    e(f"s_mul_i32 s{S_T0}, s{S_RB2}, {4*69632}"); e(f"s_lshl_b32 s{S_T1}, s{S_W}, 10"); e(f"s_add_u32 s{S_T0}, s{S_T0}, s{S_T1}")
    e(f"s_add_u32 s{S_T0}, s{S_T0}, {WS_A2}")
    e(f"v_add_u32 v{VA}, s{S_T0}, v{T0}")
    for m in range(1, 4): e(f"v_add_u32 v{VA+m}, 69632, v{VA+m-1}")
    e(f"s_mul_i32 s{S_T0}, s{S_CB}, 68"); e(f"s_add_u32 s{S_T0}, s{S_T0}, s{S_W}"); e(f"s_mul_i32 s{S_T0}, s{S_T0}, 5120")
    e(f"s_add_u32 s{S_T0}, s{S_T0}, {WS_B2}")
    e(f"v_add_u32 v{VB}, s{S_T0}, v{T0}"); e(f"v_add_u32 v{VB+1}, 4096, v{VB}")
def loads(a, i, which="ab", track=True):
    e = a.e; b = BUF + 36 * (i % 4)
    op = a.vmop if track else (lambda t, g: a.e(t))
    if "b" in which:
        e(f"s_mov_b32 s{S_T1}, {i*40960}")
        for n in range(5):
            op(f"buffer_load_dwordx4 {vr(b+16+4*n,4)}, v{VB+n//4}, {sr(S_WS,4)}, s{S_T1} offen offset:{(n%4)*1024}{LD}", ("g2", i))
    if "a" in which:
        e(f"s_mov_b32 s{S_T0}, {i*8192}")
        for m in range(4):
            op(f"buffer_load_dwordx4 {vr(b+4*m,4)}, v{VA+m}, {sr(S_WS,4)}, s{S_T0} offen{LD}", ("g2", i))
def mfmas(a, i):
    b = BUF + 36 * (i % 4)
    for m in range(4):
        for n in range(5):
            d = vr(ACC + 4 * (5 * m + n), 4)
            a.e(f"v_mfma_f32_16x16x32_bf16 {d}, {vr(b+16+4*n,4)}, {vr(b+4*m,4)}, {d if i else '0'}")
def xload(a):
    e = a.e
    e(f"v_and_b32 v{T0}, 15, v0"); e(f"v_mul_u32_u24 v{T0}, 1280, v{T0}"); e(f"v_lshrrev_b32 v{T1}, 4, v0"); e(f"v_lshl_add_u32 v{T0}, v{T1}, 3, v{T0}")
    e(f"s_mul_i32 s{S_T2}, s{S_RB2}, {64*1280}"); e(f"s_mul_i32 s{S_T3}, s{S_CB}, 160"); e(f"s_add_u32 s{S_T2}, s{S_T2}, s{S_T3}")
    for u in range(3):
        e(f"s_add_u32 s{S_T3}, s{S_W}, {8*u}"); e(f"s_min_u32 s{S_T3}, s{S_T3}, 19")
        e(f"s_mul_i32 s{S_T4}, s{S_T3}, 205"); e(f"s_lshr_b32 s{S_T4}, s{S_T4}, 10")
        e(f"s_mul_i32 s{S_T4}, s{S_T4}, {16*1280-160}"); e(f"s_lshl_b32 s{S_T3}, s{S_T3}, 5"); e(f"s_add_u32 s{S_T3}, s{S_T3}, s{S_T4}")
        e(f"s_add_u32 s{S_T3}, s{S_T3}, s{S_T2}"); e(f"v_add_u32 v{AO+u}, s{S_T3}, v{T0}")
        a.vmop(f"buffer_load_dwordx2 {vr(XR+2*u,2)}, v{AO+u}, {sr(S_X,4)}, 0 offen", "x")
def reduce_store(a):
    e = a.e
    e(f"v_lshlrev_b32 v{T0}, 4, v0"); e(f"s_mul_i32 s{S_T0}, s{S_W}, 20480"); e(f"v_add_u32 v{T1}, s{S_T0}, v{T0}")
    e(f"s_lshl_b32 s{S_T0}, s{S_W}, 10"); e(f"v_add_u32 v{T0}, s{S_T0}, v{T0}")
    a.nop(4)
    for t in range(20): e(f"ds_write_b128 v{T1}, {vr(ACC+4*t,4)} offset:{t*1024}")
    e(f"v_add_u32 v{T1}, {3*20480}, v{T0}"); e(f"v_add_u32 v{VA}, {6*20480}, v{T0}")
    a.lg(0); e("s_barrier")
    end = a.newlab()
    for u in range(3):
        if u == 2: e(f"s_cmp_ge_u32 s{S_W}, 4"); e(f"s_cbranch_scc1 {end}")
        b = BUF + 32 * u
        if u != 1:
            for uu in ((0, 1) if u == 0 else (2,)):
                for w in range(8):
                    e(f"ds_read_b128 {vr(BUF+32*uu+4*w,4)}, v{(T0,T1,VA)[w//3]} offset:{(w%3)*20480+uu*8192}")
        if u == 0: a.vmall()
        e(f"v_lshlrev_b32 v{ACC}, 16, v{XR+2*u}"); e(f"v_and_b32 v{ACC+1}, 0xffff0000, v{XR+2*u}")
        e(f"v_lshlrev_b32 v{ACC+2}, 16, v{XR+2*u+1}"); e(f"v_and_b32 v{ACC+3}, 0xffff0000, v{XR+2*u+1}")
        a.lg(8 if u == 0 else 0)
        for st in (16, 8, 4):
            for i in range(0, st, 2): e(f"v_pk_add_f32 {vr(b+i,2)}, {vr(b+i,2)}, {vr(b+st+i,2)}")
        for i in (0, 2): e(f"v_pk_add_f32 {vr(b+i,2)}, {vr(b+i,2)}, {vr(ACC+i,2)}")
        e(f"v_cvt_pk_bf16_f32 v{b}, v{b}, v{b+1}"); e(f"v_cvt_pk_bf16_f32 v{b+1}, v{b+2}, v{b+3}")
        e(f"buffer_store_dwordx2 {vr(b,2)}, v{AO+u}, {sr(S_OUT,4)}, 0 offen")
    a.lab(end)
def gemm2(a):
    e = a.e
    setup2(a)
    for i in range(4): loads(a, i)
    xload(a)
    for i in range(8):
        a.vmwait(("g2", i)); mfmas(a, i)
        if i + 4 < 8: loads(a, i + 4)
        elif i + 4 == 8:
            sk = a.newlab(); e(f"s_cmp_ge_u32 s{S_W}, 4"); e(f"s_cbranch_scc1 {sk}")
            loads(a, 8, track=False); a.lab(sk)
    sk = a.newlab(); e(f"s_cmp_ge_u32 s{S_W}, 4"); e(f"s_cbranch_scc1 {sk}")
    e("s_waitcnt vmcnt(0)"); mfmas(a, 8); a.lab(sk)
    reduce_store(a)
```

```python
from common import *
import gemm1, attn, gemm2, sys
ks = []
def mk(lab, body, vg):
    a = Asm(); a.n = 1000 * len(ks); end = f"END_{len(ks)}"
    setup(a, end); body(a); a.lab(end); a.e("s_endpgm")
    ks.append((lab, a, vg))
def k2(a):
    attn.kv_setup(a); a.e("v_lshlrev_b32 v3, 4, v0"); attn.kv_dma(a, range(8), 3); attn.q_load(a, 8, 9); attn.attn(a)
mk("g1_kernel", gemm1.gemm1, 256); mk("at_kernel", k2, 240); mk("g2_kernel", gemm2.gemm2, 244)
lds = {"g1_kernel": 163840, "at_kernel": 65536, "g2_kernel": 163840}
o = "".join(f"; @launch kernel={l} grid=(256,1,1) block=(512,1,1) lds={lds[l]}\n" for l, _, _ in ks)
o += '.amdgcn_target "amdgcn-amd-amdhsa--gfx950"\n.text\n'
for l, a, vg in ks: o += kernel_hdr(l) + "\n".join(a.L) + "\n"
o += '.section .rodata,"a"\n'
for l, a, vg in ks: o += kernel_desc(l, vg)
open(sys.argv[1], "w").write(o)
```

```python
from common import *
import gemm1 as G
L_KV = G.L_KV
S0 = 96
QF, QX = 24, 28
KF = 30
VF = 48
O = 64
AK, AKX, AV, MX, T0, T1, T2 = 1, 2, 3, 4, 8, 9, 10
NEG = 0xf149f2ca
LD = " sc1"
ST0 = 7
KVR, QR = G.X + 48, G.X + 80
def kv_load(a, i, vl):
    e = a.e
    e(f"s_add_u32 s{S_T0}, s{S_W}, {8*i}")
    if i == 7: e(f"s_min_u32 s{S_T0}, s{S_T0}, 59")
    e(f"s_lshl_b32 s{S_T0}, s{S_T0}, 10")
    e(f"s_add_i32 s{S_T0}, s{S_T0}, s70"); e(f"s_max_i32 s{S_T0}, s{S_T0}, 0"); e(f"s_add_u32 s{S_T0}, s{S_T0}, s69")
    a.vmop(f"buffer_load_dwordx4 {vr(KVR+4*i,4)}, v{vl}, {sr(S_WS,4)}, s{S_T0} offen{LD}", "kv")
def kv_write(a, vl):
    e = a.e
    e(f"s_lshl_b32 s{S_T0}, s{S_W}, 10"); e(f"v_add_u32 v{T0}, s{S_T0}, v{vl}")
    e(f"s_min_u32 s{S_T0}, s{S_T0}, 3072"); e(f"v_add_u32 v{T1}, s{S_T0}, v{vl}")
    a.vmwait("q")
    for i in range(8): e(f"ds_write_b128 v{T1 if i == 7 else T0}, {vr(KVR+4*i,4)} offset:{L_KV+8192*i}")
    for i in range(6): e(f"v_mov_b32 v{QF+i}, v{QR+i}")
def kv_setup(a):
    e = a.e
    e(f"s_mul_i32 s69, s{S_J}, 327680"); e(f"s_add_u32 s69, s69, {WS_KV}")
    e(f"s_mul_i32 s70, s{S_RB}, 20480"); e(f"s_sub_i32 s70, s70, 40960")
def q_load(a, t0, t1):
    e = a.e
    e(f"v_and_b32 v{t0}, 31, v0"); e(f"v_lshrrev_b32 v{t1}, 5, v0"); e(f"v_lshlrev_b32 v{t0}, 4, v{t0}")
    e(f"v_lshl_add_u32 v{AKX}, v{t1}, 3, v{t0}")
    e(f"v_lshl_add_u32 v{AK}, v{t1}, 9, v{t0}"); e(f"s_mul_i32 s{S_T3}, s{S_WN}, 1536"); e(f"v_add_u32 v{AK}, s{S_T3}, v{AK}")
    e(f"s_lshl_b32 s{S_T3}, s{S_RB}, 2"); e(f"s_add_u32 s{S_T3}, s{S_T3}, s{S_WM}"); e(f"s_mul_i32 s{S_T3}, s{S_T3}, 2560")
    e(f"s_mul_i32 s{S_T4}, s{S_J}, 163840"); e(f"s_add_u32 s{S_T3}, s{S_T3}, s{S_T4}")
    a.vmop(f"buffer_load_dwordx4 {vr(QR,4)}, v{AK}, {sr(S_WS,4)}, s{S_T3} offen{LD}", "q")
    a.vmop(f"buffer_load_dwordx2 {vr(QR+4,2)}, v{AKX}, {sr(S_WS,4)}, s{S_T3} offen offset:1024{LD}", "q")
def attn(a, mid, pre):
    e = a.e
    e(f"s_mul_i32 s{S_T3}, s{S_WM}, 5120"); e(f"s_add_u32 s{S_T3}, s{S_T3}, {L_KV}")
    e(f"v_add_u32 v{AK}, s{S_T3}, v{AK}"); e(f"v_add_u32 v{AKX}, s{S_T3}, v{AKX}")
    e(f"v_and_b32 v{T0}, 3, v0"); e(f"v_bfe_u32 v{T1}, v0, 2, 1"); e(f"v_lshl_add_u32 v{T2}, v{T1}, 3, v{T0}")
    e(f"v_bfe_u32 v{T1}, v0, 3, 1"); e(f"v_lshl_add_u32 v{T2}, v{T1}, 2, v{T2}")
    e(f"s_mul_i32 s{S_T4}, s{S_WN}, 24"); e(f"v_add_u32 v{T2}, s{S_T4}, v{T2}")
    e(f"s_lshl_b32 s{S_T4}, s{S_WN}, 2"); e(f"s_add_u32 s{S_T4}, s{S_T4}, 16"); e(f"v_add_u32 v{T0}, s{S_T4}, v{T0}")
    e(f"v_and_b32 v{T1}, 16, v0"); e(f"v_cmp_eq_u32 vcc, 0, v{T1}")
    e(f"v_lshrrev_b32 v{T1}, 5, v0"); e(f"v_mul_u32_u24 v{T1}, 640, v{T1}")
    e(f"v_cndmask_b32 v{T2}, v{T0}, v{T2}, vcc")
    e(f"v_lshl_add_u32 v{AV}, v{T2}, 4, v{T1}"); e(f"v_add_u32 v{AV}, s{S_T3}, v{AV}")
    for i in range(16): e(f"v_mov_b32 v{VF+i}, s{S_ONES}")
    e("s_mov_b32 s72, 0x000fffff"); e("s_mov_b32 s73, 0x000fffff")
    e(f"v_and_b32 v{T0}, 31, v0"); e(f"v_lshrrev_b32 v{T1}, 5, v0"); e(f"v_lshlrev_b32 v{T1}, 2, v{T1}"); e(f"v_sub_u32 v{T0}, v{T0}, v{T1}")
    e(f"v_mov_b32 v{T1}, {hex(NEG)}"); e(f"v_mov_b32 v{T2}, 0")
    for r in range(16):
        sp = ("vcc", "s[74:75]")[r & 1]
        e(f"v_cmp_gt_i32 {sp}, {8*(r//4)+r%4}, v{T0}")
        if r:
            pp = ("vcc", "s[74:75]")[(r-1) & 1]
            e(f"v_cndmask_b32 v{S0+r-1}, v{T1}, v{T2}, {pp}"); e(f"v_cndmask_b32 v{S0+128+r-1}, v{T2}, v{T1}, {pp}")
        else: a.nop(1)
    e(f"v_cndmask_b32 v{S0+15}, v{T1}, v{T2}, s[74:75]"); e(f"v_cndmask_b32 v{S0+128+15}, v{T2}, v{T1}, s[74:75]")
    e(f"s_sub_u32 s74, s{S_WN}, 1"); e("s_not_b32 s75, s74")
    a.lg(0); e("s_barrier")
    def kread(b):
        k = KF + 6 * (b % 3)
        e(f"ds_read_b128 {vr(k,4)}, v{AK} offset:{b*5120}"); e(f"ds_read_b64 {vr(k+4,2)}, v{AKX} offset:{b*5120+1024}")
    def vread(f):
        e("s_mov_b64 exec, s[72:73]")
        for g in f: e(f"ds_read_b128 {vr(VF+4*(g%4),4)}, v{AV} offset:{(g//2)*5120+2560+(g%2)*1280}")
        e("s_mov_b64 exec, -1")
    stamp(a, ST0); kread(0); kread(1)
    e(f"v_cndmask_b32 v{QX}, v{T2}, v{QX}, s[74:75]"); e(f"v_cndmask_b32 v{QX+1}, v{T2}, v{QX+1}, s[74:75]")
    def mx(b):
        s = S0 + 16 * b
        for i in range(8):
            m = MX + (i & 1)
            e(f"v_max3_f32 v{m}, v{s+2*i}, v{s+2*i+1}, v{m}")
    e(f"v_mov_b32 v{MX}, v{T1}"); e(f"v_mov_b32 v{MX+1}, v{T1}")
    order = list(range(9))
    for b in order:
        if b + 2 < 9: kread(b + 2); a.lg(4)
        elif b + 1 < 9: a.lg(2)
        else: a.lg(0)
        k = KF + 6 * (b % 3); d = vr(S0 + 16 * b, 16)
        e(f"v_mfma_f32_32x32x16_bf16 {d}, {vr(k,4)}, {vr(QF,4)}, {d if b in (0,8) else '0'}")
        e(f"v_mfma_f32_32x32x8bf16_1k {d}, {vr(k+4,2)}, {vr(QX,2)}, {d}")
        pre.b(1, 9)
    vread([0, 1, 2, 3])
    done = a.newlab()
    e(f"s_lshl_b32 s{S_T3}, s{S_RB}, 2"); e(f"s_add_u32 s{S_T3}, s{S_T3}, s{S_WM}")
    e(f"s_cmp_ge_u32 s{S_T3}, 8"); e(f"s_cbranch_scc1 {done}")
    a.nop(16)
    for b in range(8):
        if b: e(f"s_cmp_ge_u32 s{S_T3}, {8-b}"); e(f"s_cbranch_scc1 {done}")
        for i in range(16): e(f"v_mov_b32 v{S0+16*b+i}, v{T1}")
    a.lab(done)
    if mid: mid()
    for b in range(8): mx(b); pre.b(1, 15)
    a.nop(4); mx(8)
    e(f"v_max_f32 v{MX}, v{MX}, v{MX+1}"); e(f"v_mov_b32 v{MX+1}, v{MX}"); a.nop(2)
    e(f"v_permlane32_swap_b32 v{MX}, v{MX+1}"); a.nop(1)
    e(f"v_max_f32 v{MX}, v{MX}, v{MX+1}")
    for g in range(18):
        s = S0 + 8 * g
        for i in range(4): e(f"v_pk_add_f32 {vr(s+2*i,2)}, {vr(s+2*i,2)}, {vr(MX,2)} op_sel_hi:[1,0] neg_lo:[0,1] neg_hi:[0,1]")
        for i in range(8): e(f"v_exp_f32 v{s+i}, v{s+i}")
        if g >= 1:
            p = g - 1
            if p + 3 < 18 and p >= 1: vread([p + 3])
            a.lg(min(3, 17 - p) if p >= 1 else 3)
            e(f"v_mfma_f32_32x32x16_bf16 {vr(O,16)}, {vr(VF+4*(p%4),4)}, {vr(S0+8*p,4)}, {vr(O,16) if p else '0'}")
        else: a.nop(1)
        for i in range(4): e(f"v_cvt_pk_bf16_f32 v{s+i}, v{s+2*i}, v{s+2*i+1}")
        pre.g(g)
    a.lg(0); a.nop(1)
    e(f"v_mfma_f32_32x32x16_bf16 {vr(O,16)}, {vr(VF+4*(17%4),4)}, {vr(S0+8*17,4)}, {vr(O,16)}")
    stamp(a, ST0+1)
    e(f"v_bfe_u32 v{T0}, v0, 4, 1"); e(f"v_mul_u32_u24 v{T0}, 69632, v{T0}"); e(f"v_and_b32 v{T1}, 15, v0"); e(f"v_lshl_add_u32 v{T0}, v{T1}, 4, v{T0}")
    e(f"v_lshrrev_b32 v{T1}, 5, v0"); e(f"v_lshl_add_u32 v{T1}, v{T1}, 8, v{T0}")
    e(f"s_mul_i32 s{S_T3}, s{S_T3}, {2*69632}"); e(f"s_mul_i32 s{S_T4}, s{S_J}, 1280"); e(f"s_add_u32 s{S_T3}, s{S_T3}, s{S_T4}")
    e(f"s_add_u32 s{S_T3}, s{S_T3}, {WS_A2+192*256}")
    e(f"s_mul_i32 s{S_T4}, s{S_WN}, 768"); e(f"s_add_u32 s{S_T4}, s{S_T4}, s{S_T3}")
    e(f"s_lshl_b32 s{S_T5}, s{S_WN}, 3"); e(f"s_add_u32 s{S_T3}, s{S_T3}, s{S_T5}")
    a.nop(6)
    e(f"v_rcp_f32 v{MX}, v{O+12}"); a.nop(1)
    for i in range(6): e(f"v_pk_mul_f32 {vr(O+2*i,2)}, {vr(O+2*i,2)}, {vr(MX,2)} op_sel_hi:[1,0]")
    for i in range(6): e(f"v_cvt_pk_bf16_f32 v{O+i}, v{O+2*i}, v{O+2*i+1}")
    a.vmop(f"buffer_store_dwordx4 {vr(O,4)}, v{T1}, {sr(S_WS,4)}, s{S_T4} offen{G.SC}", "o")
    e("s_mov_b32 exec_hi, 0")
    a.vmop(f"buffer_store_dwordx2 {vr(O+4,2)}, v{T0}, {sr(S_WS,4)}, s{S_T3} offen offset:512{G.SC}", "o")
    e("s_mov_b64 exec, -1")
```

```python
NAME = "parallel_sum__sliding_block__glu_gated_bilinear__prompt"
WS_Q = 0; WS_KV = 0x280000; WS_A2 = 0x780000; WS_B2 = 0x1000000
WS_END = 0x2000000
WS_ST = 0x1400000; WS_CS = 0x1410000; WS_FL = 0x1460000; WS_EP = 0x1480000
HUGE = 0x7000000
class Asm:
    def __init__(s):
        s.L = []; s.vm = []; s.n = 0; s.lq = []; s.tail = []
    def e(s, t): s.L.append("  " + t)
    def lab(s, t): s.L.append(t + ":")
    def newlab(s, p="L"):
        s.n += 1; return f"{p}_{s.n}"
    def vmop(s, t, tag): s.e(t); s.vm.append(tag)
    def vmwait(s, tag, lgkm=None):
        idx = max(i for i, x in enumerate(s.vm) if x == tag)
        n = len(s.vm) - 1 - idx
        assert n <= 63
        s.e(f"s_waitcnt vmcnt({n})" + (f" lgkmcnt({lgkm})" if lgkm is not None else ""))
        s.vm = s.vm[idx+1:]
    def vmall(s):
        s.e("s_waitcnt vmcnt(0)"); s.vm = []
    def lg(s, n=0):
        s.e(f"s_waitcnt lgkmcnt({n})"); s.lq = s.lq[len(s.lq)-n:] if n else []
    def dsop(s, t, tag): s.e(t); s.lq.append(tag)
    def lgwait(s, tag):
        if tag not in s.lq: return
        idx = max(i for i, x in enumerate(s.lq) if x == tag)
        n = len(s.lq) - 1 - idx
        s.lg(min(n, 15))
    def nop(s, n):
        while n > 0:
            k = min(n, 8); s.e(f"s_nop {k-1}"); n -= k
def vr(a, n): return f"v[{a}:{a+n-1}]" if n > 1 else f"v{a}"
def sr(a, n): return f"s[{a}:{a+n-1}]" if n > 1 else f"s{a}"
S_X, S_WQ, S_GU, S_R, S_WS, S_OUT, S_DBG = 4, 8, 12, 16, 20, 24, 28
S_RB, S_J, S_W, S_WM, S_WN, S_ONES = 32, 33, 34, 35, 36, 37
S_T0, S_T1, S_T2, S_T3, S_T4, S_T5 = 38, 39, 40, 41, 42, 43
S_RB2, S_CB = 44, 45
S_P, S_FLA, S_CNT, S_TAG = 92, 79, 71, 3
S_M0X, S_M0G = 46, 47
def srd(a, d, lo, size):
    a.e(f"s_mov_b32 s{d}, s{lo}"); a.e(f"s_mov_b32 s{d+1}, s{lo+1}")
    a.e(f"s_mov_b32 s{d+2}, {size}"); a.e(f"s_mov_b32 s{d+3}, 0x20000")
def setup(a, endlab):
    a.e("s_cmp_ge_u32 s2, 256"); a.e(f"s_cbranch_scc1 {endlab}")
    a.e("s_load_dwordx16 s[48:63], s[0:1], 0")
    a.e("s_load_dwordx4 s[64:67], s[0:1], 64")
    a.e("v_lshrrev_b32 v1, 6, v0")
    a.e("v_and_b32 v0, 63, v0")
    a.e(f"v_readfirstlane_b32 s{S_W}, v1")
    a.e(f"s_and_b32 s{S_T0}, s2, 7"); a.e(f"s_lshr_b32 s{S_T1}, s2, 3")
    a.e(f"s_and_b32 s{S_T2}, s{S_T1}, 7"); a.e(f"s_lshr_b32 s{S_T3}, s{S_T1}, 3")
    a.e(f"s_and_b32 s{S_RB}, s{S_T0}, 1"); a.e(f"s_lshl_b32 s{S_RB}, s{S_RB}, 3"); a.e(f"s_add_u32 s{S_RB}, s{S_RB}, s{S_T2}")
    a.e(f"s_lshr_b32 s{S_J}, s{S_T0}, 1"); a.e(f"s_lshl_b32 s{S_J}, s{S_J}, 2"); a.e(f"s_add_u32 s{S_J}, s{S_J}, s{S_T3}")
    a.e(f"s_and_b32 s{S_RB2}, s{S_T0}, 3"); a.e(f"s_lshl_b32 s{S_RB2}, s{S_RB2}, 3"); a.e(f"s_add_u32 s{S_RB2}, s{S_RB2}, s{S_T2}")
    a.e(f"s_lshr_b32 s{S_CB}, s{S_T0}, 2"); a.e(f"s_lshl_b32 s{S_CB}, s{S_CB}, 2"); a.e(f"s_add_u32 s{S_CB}, s{S_CB}, s{S_T3}")
    a.e(f"s_and_b32 s{S_WM}, s{S_W}, 3"); a.e(f"s_lshr_b32 s{S_WN}, s{S_W}, 2")
    a.e(f"s_mov_b32 s{S_ONES}, 0x3f803f80")
    a.e(f"s_lshl_b32 s{S_M0X}, s{S_W}, 11")
    a.e(f"s_mul_i32 s{S_M0G}, s{S_W}, 3072")
    a.e("s_waitcnt lgkmcnt(0)")
    srd(a, S_X, 48, 2048*1280); srd(a, S_WQ, 50, 640*3840); srd(a, S_WS, 66, WS_END)
    srd(a, S_OUT, 62, 2048*1280)
    a.e(f"s_cmp_eq_u32 s{S_WN}, 0")
    a.e(f"s_cselect_b32 s{S_GU}, s56, s58"); a.e(f"s_cselect_b32 s{S_GU+1}, s57, s59")
    a.e(f"s_mov_b32 s{S_GU+2}, {640*3072}"); a.e(f"s_mov_b32 s{S_GU+3}, 0x20000")
    a.e("s_cmp_lt_u32 s2, 120")
    a.e(f"s_cselect_b32 s{S_R}, s60, s52"); a.e(f"s_cselect_b32 s{S_R+1}, s61, s53")
    a.e(f"s_cselect_b32 s{S_R+2}, {1536*1280}, {0}"); a.e(f"s_cselect_b32 s{S_T0}, 0, {640*1280}")
    a.e(f"s_add_u32 s{S_R+2}, s{S_R+2}, s{S_T0}"); a.e(f"s_mov_b32 s{S_R+3}, 0x20000")
def kernel_hdr(lab):
    return f".globl {lab}\n.p2align 8\n.type {lab},@function\n{lab}:\n"
def kernel_desc(lab, vg, sg=96):
    return f""".p2align 6
.amdhsa_kernel {lab}
  .amdhsa_next_free_vgpr {vg}
  .amdhsa_next_free_sgpr {sg}
  .amdhsa_accum_offset {(vg+3)//4*4}
  .amdhsa_group_segment_fixed_size 0
  .amdhsa_kernarg_size 80
  .amdhsa_user_sgpr_count 2
  .amdhsa_user_sgpr_kernarg_segment_ptr 1
  .amdhsa_system_sgpr_workgroup_id_x 1
.end_amdhsa_kernel
"""
import os
DBG = int(os.environ.get("DBG", "0"))
NST = 12
STG = int(os.environ.get("STG", "-1"))
def stamp(a, i, stg=False):
    if not DBG: return
    if (STG >= 0) != stg and i not in (0, 11): return
    a.e("s_memtime s[76:77]" if DBG==2 else "s_memrealtime s[76:77]"); a.e("s_waitcnt lgkmcnt(0)"); a.e(f"s_mov_b32 s{80+i}, s76")
def stamp_init(a):
    if not DBG: return
    for i in range(NST): a.e(f"s_mov_b32 s{80+i}, 0")
def stamp_out(a, kidx):
    if not DBG: return
    a.e("s_waitcnt vmcnt(0)")
    stamp(a, NST - 1)
    for i in range(NST): a.e(f"v_mov_b32 v{4+i}, s{80+i}")
    a.e(f"s_lshl_b32 s76, s2, 3"); a.e(f"s_add_u32 s76, s76, s{S_W}"); a.e("s_lshl_b32 s76, s76, 6")
    a.e(f"s_add_u32 s76, s76, {0x1E00000 + kidx*0x20000}")
    a.e("v_mov_b32 v1, 0"); a.e("s_mov_b64 exec, 1")
    for i in range(NST // 4): a.e(f"buffer_store_dwordx4 {vr(4+4*i,4)}, v1, {sr(S_WS,4)}, s76 offen offset:{16*i}")
    a.e("s_waitcnt vmcnt(0)")

def flag(a, val, t0, t1):
    a.e(f"v_lshl_add_u32 v{t0}, v0, 2, s{S_FLA}"); a.e(f"s_add_u32 s{S_T0}, s{S_TAG}, {val}"); a.e(f"v_mov_b32 v{t1}, s{S_T0}")
    a.vmop(f"buffer_store_dword v{t1}, v{t0}, {sr(S_WS,4)}, 0 offen sc1", "flag")
def fchk(v, need):
    return [f"v_subrev_u32 v{v}, s{S_TAG}, v{v}", f"v_subrev_u32 v{v}, {need}, v{v}", f"v_cmp_lt_u32 vcc, {3-need}, v{v}"]
def poll_check(a, load, tag, chk):
    sp, rt, lp = a.newlab("SP"), a.newlab("RT"), a.newlab("LP")
    a.vmwait(tag)
    for c in chk: a.e(c)
    a.e(f"s_cbranch_vccnz {sp}"); a.lab(rt)
    t = [f"{sp}:", f"  s_mov_b32 s{S_CNT}, 0", f"{lp}:"] + ["  " + l for l in load] + ["  s_waitcnt vmcnt(0)"] + ["  " + c for c in chk]
    t += [f"  s_cbranch_vccz {rt}", f"  s_add_u32 s{S_CNT}, s{S_CNT}, 1", f"  s_cmp_lt_u32 s{S_CNT}, 0x40000", f"  s_cbranch_scc1 {lp}", f"  s_branch {rt}"]
    a.tail += t
```

```python
from common import *
VX0, VX1, VW, VG, RDX, RDXT, RDW, RDG, SUM, SSQ, CS, T0, M, R, T1, T2 = 1, 2, 3, 4, 7, 8, 9, 11, 14, 15, 16, 19, 20, 21, 22, 23
WB, ACC, X = 24, 48, 96
S_D = 78
DSP1, DSP2 = int(os.environ.get('DSP1', 2)), int(os.environ.get('DSP2', 3))
L_F, L_FG, L_R, L_RM, L_SP, L_CP = 0, 512, 2048, 2560, 3072, 4096
L_KV = 4096
L_RL = 16384
SC = " sc1"
def slot1(s): return 32768 * (1 + (s + 3) % 4)
XP = os.environ.get("XP", "")
def pslot(s): return 65536 + 24576 * ((s - 10) % 4)

def addr_setup(a):
    e = a.e
    e(f"v_lshrrev_b32 v{T0}, 3, v0"); e(f"v_lshrrev_b32 v{T1}, 4, v0"); e(f"v_and_b32 v{T2}, 7, v0")
    e(f"s_lshl_b32 s{S_T0}, s{S_RB}, 7"); e(f"s_lshl_b32 s{S_T1}, s{S_W}, 4"); e(f"s_add_u32 s{S_T0}, s{S_T0}, s{S_T1}")
    e(f"v_add_u32 v{T0}, s{S_T0}, v{T0}"); e(f"v_mul_u32_u24 v{T0}, 1280, v{T0}")
    e(f"v_xor_b32 v{T2}, v{T2}, v{T1}")
    e(f"v_lshl_add_u32 v{VX0}, v{T2}, 4, v{T0}")
    e(f"v_xor_b32 v{T2}, 4, v{T2}"); e(f"v_add_u32 v{T0}, {10240-1024}, v{T0}")
    e(f"v_lshl_add_u32 v{VX1}, v{T2}, 4, v{T0}")
    e(f"s_lshl_b32 s{S_T1}, s{S_W}, 3"); e(f"v_add_u32 v{T0}, s{S_T1}, v{T1}")
    e(f"v_mul_u32_u24 v{VW}, 3840, v{T0}")
    e(f"v_bfe_u32 v{T2}, v0, 2, 2"); e(f"v_xor_b32 v{T2}, v{T2}, v{T1}"); e(f"v_lshl_add_u32 v{VW}, v{T2}, 6, v{VW}")
    e(f"v_and_b32 v{T2}, 3, v0"); e(f"v_lshl_add_u32 v{VW}, v{T2}, 4, v{VW}")
    e(f"s_min_u32 s{S_T0}, s{S_J}, 14"); e(f"s_lshl_b32 s{S_T0}, s{S_T0}, 8"); e(f"v_add_u32 v{VW}, s{S_T0}, v{VW}")
def addr_setup2(a):
    e = a.e
    RL = ACC + 32
    e(f"s_mul_i32 s{S_T0}, s2, 205"); e(f"s_lshr_b32 s{S_T0}, s{S_T0}, 10")
    e(f"s_mul_i32 s{S_T1}, s{S_T0}, 5"); e(f"s_sub_u32 s{S_T1}, s2, s{S_T1}")
    e(f"s_sub_u32 s{S_T2}, s{S_T0}, 24"); e(f"s_cmp_lt_u32 s{S_T0}, 24"); e(f"s_cselect_b32 s{S_T2}, s{S_T0}, s{S_T2}")
    e(f"s_mul_i32 s{S_T2}, s{S_T2}, {64*1280}"); e(f"s_lshl_b32 s{S_T3}, s{S_T1}, 8"); e(f"s_add_u32 s{S_T2}, s{S_T2}, s{S_T3}")
    e(f"v_mul_u32_u24 v{RL}, 1280, v{T0}"); e(f"v_and_b32 v{T2}, 15, v0"); e(f"v_lshl_add_u32 v{RL}, v{T2}, 4, v{RL}")
    sk = a.newlab()
    e("s_cmp_ge_u32 s2, 170"); e(f"s_cbranch_scc1 {sk}")
    e(f"s_add_u32 m0, s{S_M0X}, {L_RL}"); e(f"s_add_u32 s{S_T3}, s{S_T2}, {4*1280-1024}")
    e(f"buffer_load_dwordx4 v{RL}, {sr(S_R,4)}, s{S_T2} offen lds")
    e(f"buffer_load_dwordx4 v{RL}, {sr(S_R,4)}, s{S_T3} offen offset:1024 lds")
    a.lab(sk)
    e(f"s_lshl_b32 s{S_T1}, s{S_T1}, 3"); e(f"s_add_u32 s{S_T1}, s{S_T1}, s{S_W}")
    e(f"s_mul_i32 s{S_T2}, s{S_T1}, 205"); e(f"s_lshr_b32 s{S_T2}, s{S_T2}, 10")
    e(f"s_mul_i32 s{S_T2}, s{S_T2}, {340-5}"); e(f"s_add_u32 s{S_T2}, s{S_T2}, s{S_T1}")
    e(f"s_mul_i32 s{S_T0}, s{S_T0}, 10"); e(f"s_add_u32 s{S_T2}, s{S_T2}, s{S_T0}")
    e(f"s_lshl_b32 s{S_T2}, s{S_T2}, 10"); e(f"s_add_u32 s68, s{S_T2}, {WS_B2}")
def addr_setup3(a):
    e = a.e
    for i in range(3):
        e(f"v_add_u32 v{T0}, {64*i}, v0"); e(f"v_mul_u32_u24 v{T1}, 171, v{T0}"); e(f"v_lshrrev_b32 v{T1}, 11, v{T1}")
        e(f"v_mul_u32_u24 v{T2}, 12, v{T1}"); e(f"v_sub_u32 v{T0}, v{T0}, v{T2}")
        e(f"s_lshl_b32 s{S_T0}, s{S_WN}, 1"); e(f"v_xor_b32 v{T0}, s{S_T0}, v{T0}")
        e(f"v_mul_u32_u24 v{T1}, 3072, v{T1}"); e(f"v_lshl_add_u32 v{VG+i}, v{T0}, 4, v{T1}")
        e(f"s_mul_i32 s{S_T0}, s{S_WM}, {16*3072}"); e(f"s_mul_i32 s{S_T1}, s{S_J}, 192"); e(f"s_add_u32 s{S_T0}, s{S_T0}, s{S_T1}")
        e(f"s_sub_u32 s{S_T0}, s{S_T0}, {1024*i}")
        e(f"v_add_u32 v{VG+i}, s{S_T0}, v{VG+i}")
    e(f"v_and_b32 v{T0}, 31, v0"); e(f"v_lshrrev_b32 v{T1}, 5, v0"); e(f"v_bfe_u32 v{T2}, v0, 1, 3")
    e(f"v_xor_b32 v{T2}, v{T2}, v{T1}"); e(f"v_lshlrev_b32 v{T2}, 4, v{T2}"); e(f"v_lshl_add_u32 v{RDX}, v{T0}, 7, v{T2}")
    e(f"s_lshl_b32 s{S_T0}, s{S_WM}, 12"); e(f"v_add_u32 v{RDX}, s{S_T0}, v{RDX}")
    e(f"v_bfe_u32 v{T0}, v0, 2, 2")
    e(f"v_lshlrev_b32 v{RDW}, 11, v{T1}"); e(f"v_lshl_add_u32 v{RDW}, v{T0}, 8, v{RDW}")
    e(f"v_and_b32 v{T2}, 1, v0"); e(f"v_lshl_add_u32 v{RDW}, v{T2}, 5, v{RDW}")
    e(f"v_and_b32 v{T2}, 16, v0"); e(f"v_add_u32 v{RDW}, v{T2}, v{RDW}")
    e(f"v_and_b32 v{T2}, 2, v0"); e(f"v_lshl_add_u32 v{RDW}, v{T2}, 2, v{RDW}")
    e(f"s_lshl_b32 s{S_T0}, s{S_WN}, 1"); e(f"v_xor_b32 v{T2}, s{S_T0}, v{T0}")
    e(f"v_lshl_add_u32 v{RDW}, v{T2}, 6, v{RDW}"); e(f"v_xor_b32 v{RDW+1}, 64, v{RDW}")
    e(f"v_lshl_add_u32 v{T0}, v{T1}, 3, v{T0}"); e(f"v_mul_u32_u24 v{T0}, 192, v{T0}")
    e(f"v_bfe_u32 v{T1}, v0, 4, 1"); e(f"v_mul_u32_u24 v{T2}, 12288, v{T1}"); e(f"v_add_u32 v{T0}, v{T0}, v{T2}")
    e(f"v_and_b32 v{T2}, 1, v0"); e(f"v_lshl_add_u32 v{T0}, v{T2}, 4, v{T0}")
    e(f"v_and_b32 v{T2}, 2, v0"); e(f"v_lshl_add_u32 v{T0}, v{T2}, 2, v{T0}")
    e(f"v_add_u32 v{T0}, 0x10000, v{T0}")
    e(f"s_mul_i32 s{S_T0}, s{S_WN}, 3")
    for i in range(3):
        e(f"s_add_u32 s{S_T1}, s{S_T0}, {i}"); e(f"v_xor_b32 v{T2}, s{S_T1}, v{T1}")
        e(f"v_lshl_add_u32 v{RDG+i}, v{T2}, 5, v{T0}")
    for i in range(2): e(f"v_add_u32 v{RDW+i}, 0x18000, v{RDW+i}")

PL, PA, PS, U0, U1, U2 = X + 128, X + 144, X + 152, X + 157, X + 158, X + 159
def prep_load(a):
    e = a.e
    e(f"s_lshl_b32 s{S_T0}, s{S_RB}, 4"); e(f"s_add_u32 s{S_T0}, s{S_T0}, s{S_J}")
    e(f"s_lshl_b32 s{S_FLA}, s{S_T0}, 8"); e(f"s_add_u32 s{S_FLA}, s{S_FLA}, {WS_FL}")
    e(f"s_lshl_b32 s{S_T0}, s{S_T0}, 3"); e(f"s_add_u32 s69, s{S_T0}, s{S_W}"); e(f"s_mul_i32 s{S_T0}, s69, 1280")
    e(f"v_lshlrev_b32 v{U0}, 3, v0"); e(f"v_lshlrev_b32 v{U1}, 2, v0")
    a.vmop(f"buffer_load_dwordx2 {vr(PS,2)}, v{U0}, {sr(S_X,4)}, s{S_T0} offen", "pl")
    a.vmop(f"buffer_load_dwordx2 {vr(PS+2,2)}, v{U0}, {sr(S_X,4)}, s{S_T0} offen offset:512", "pl")
    a.vmop(f"buffer_load_dword v{PS+4}, v{U1}, {sr(S_X,4)}, s{S_T0} offen offset:1024", "pl")
    e(f"s_cmp_eq_u32 s{S_W}, 0"); e(f"s_cselect_b32 s{S_FLA}, s{S_FLA}, {HUGE}"); e(f"s_cselect_b32 s69, s69, {HUGE>>4}")
    e(f"s_lshr_b32 s{S_T0}, s2, 2"); e(f"s_and_b32 s{S_T0}, s{S_T0}, 62"); e(f"s_and_b32 s{S_T1}, s2, 1"); e(f"s_add_u32 s{S_T0}, s{S_T0}, s{S_T1}")
    e(f"s_sub_u32 s{S_T0}, 63, s{S_T0}"); e(f"s_mul_i32 s{S_T1}, s{S_T0}, 205"); e(f"s_lshr_b32 s{S_T1}, s{S_T1}, 10")
    e(f"s_mul_i32 s{S_T2}, s{S_T1}, 5"); e(f"s_sub_u32 s{S_T0}, s{S_T0}, s{S_T2}")
    e(f"s_lshr_b32 s{S_T2}, s{S_J}, 2")
    e(f"s_cmp_lt_u32 s{S_T1}, 7"); e(f"s_cselect_b32 s{S_P}, s56, s58"); e(f"s_cselect_b32 s{S_P+1}, s57, s59")
    e(f"s_cselect_b32 s{S_T3}, 4, 7"); e(f"s_cselect_b32 s{S_T4}, 16, 28")
    e(f"s_cmp_lt_u32 s{S_T1}, 4"); e(f"s_cselect_b32 s{S_P}, s50, s{S_P}"); e(f"s_cselect_b32 s{S_P+1}, s51, s{S_P+1}")
    e(f"s_cselect_b32 s{S_T3}, 0, s{S_T3}"); e(f"s_cselect_b32 s{S_T4}, 0, s{S_T4}"); e(f"s_cselect_b32 s{S_T5}, 4, 3")
    e(f"s_mul_i32 s{S_T2}, s{S_T2}, s{S_T5}"); e(f"s_add_u32 s{S_T2}, s{S_T2}, s{S_T1}"); e(f"s_sub_u32 s{S_T2}, s{S_T2}, s{S_T3}")
    e(f"s_add_u32 s{S_T5}, s{S_T5}, 1"); e(f"s_mul_i32 s{S_T5}, s{S_T5}, 768")
    e(f"s_mul_i32 s{S_P+2}, s{S_T5}, 640"); e(f"s_mov_b32 s{S_P+3}, 0x20000")
    e(f"s_add_u32 s{S_T4}, s{S_T4}, s{S_T2}"); e(f"s_mul_i32 s70, s{S_T0}, 40"); e(f"s_add_u32 s70, s70, s{S_T4}"); e(f"s_lshl_b32 s70, s70, 10")
    e(f"s_add_u32 s70, s70, {WS_CS}")
    e(f"s_cmp_lt_u32 s{S_T1}, 10"); e(f"s_cselect_b32 s{S_P+2}, s{S_P+2}, 0"); e(f"s_cselect_b32 s70, s70, {HUGE}")
    e(f"s_cmp_lt_u32 s{S_W}, 2"); e(f"s_cselect_b32 s70, s70, {HUGE}")
    e(f"s_lshl_b32 s{S_T0}, s{S_T0}, 3"); e(f"s_add_u32 s{S_T0}, s{S_T0}, s{S_W}"); e(f"s_lshl_b32 s{S_T0}, s{S_T0}, 4")
    e(f"s_mul_i32 s{S_T0}, s{S_T0}, s{S_T5}"); e(f"s_lshl_b32 s{S_T2}, s{S_T2}, 8"); e(f"s_add_u32 s{S_T0}, s{S_T0}, s{S_T2}")
    e(f"v_lshrrev_b32 v{U0}, 4, v0"); e(f"v_mul_u32_u24 v{U0}, s{S_T5}, v{U0}"); e(f"v_and_b32 v{U1}, 15, v0"); e(f"v_lshl_add_u32 v{U0}, v{U1}, 4, v{U0}")
    e(f"s_lshl_b32 s{S_T5}, s{S_T5}, 2")
    for q in range(4):
        a.vmop(f"buffer_load_dwordx4 {vr(PL+4*q,4)}, v{U0}, {sr(S_P,4)}, s{S_T0} offen", "pl2")
        if q < 3: e(f"s_add_u32 s{S_T0}, s{S_T0}, s{S_T5}")
def prep_lines():
    L = []; e = L.append
    e(f"v_mov_b32 v{M}, 0"); e(f"v_mov_b32 v{R}, 0")
    for i in range(5): e(f"v_dot2c_f32_bf16 v{M}, s{S_ONES}, v{PS+i}"); e(f"v_dot2c_f32_bf16 v{R}, v{PS+i}, v{PS+i}")
    ch = [f"v_permlane32_swap_b32 v{M}, v{R}", f"v_add_f32 v{M}, v{M}, v{R}", f"v_mov_b32 v{R}, v{M}", f"v_permlane16_swap_b32 v{M}, v{R}", f"v_add_f32 v{M}, v{M}, v{R}"]
    ch += [f"v_add_f32_dpp v{M}, v{M}, v{M} row_ror:{k} row_mask:0xf bank_mask:0xf" for k in (8, 4, 2, 1)]
    ch += [f"v_mul_f32 v{M}, {hex(0x3acccccd)}, v{M}", f"v_mov_b32 v{R}, v{M}", f"v_permlane32_swap_b32 v{M}, v{R}",
           f"v_fma_f32 v{R}, -v{M}, v{M}, v{R}", f"v_max_f32 v{R}, 0, v{R}", f"v_cvt_pk_bf16_f32 v{M}, v{M}, v{R}",
           f"v_and_b32 v{R}, 0xffff0000, v{M}", f"v_add_f32 v{R}, {hex(0x3727c5ac)}, v{R}", f"v_cvt_pk_bf16_f32 v{R}, v{R}, v{R}", f"v_lshlrev_b32 v{R}, 16, v{R}",
           f"v_sqrt_f32 v{R}, v{R}", f"v_cvt_pk_bf16_f32 v{R}, v{R}, v{R}", f"v_lshlrev_b32 v{R}, 16, v{R}", f"v_rcp_f32 v{R}, v{R}",
           f"v_lshlrev_b32 v{M}, 16, v{M}", f"v_sub_f32 v{M}, 0, v{M}"]
    cs = []
    for q in range(4):
        for i in range(4):
            s = PL + 4 * q + i
            if q == 0: cs += [f"v_lshlrev_b32 v{PA+2*i}, 16, v{s}", f"v_and_b32 v{PA+2*i+1}, 0xffff0000, v{s}"]
            else: cs += [f"v_lshlrev_b32 v{U2}, 16, v{s}", f"v_and_b32 v{s}, 0xffff0000, v{s}", f"v_add_f32 v{PA+2*i}, v{PA+2*i}, v{U2}", f"v_add_f32 v{PA+2*i+1}, v{PA+2*i+1}, v{s}"]
    for _ in range(3): e(cs.pop(0))
    for c in ch:
        e(c)
        for _ in range(2): e(cs.pop(0))
    for c in cs: e(c)
    e(f"v_and_b32 v{U0}, 15, v0"); e(f"v_lshrrev_b32 v{U1}, 4, v0"); e(f"v_lshlrev_b32 v{U0}, 5, v{U0}"); e(f"v_lshl_add_u32 v{U0}, v{U1}, 3, v{U0}")
    for i in range(4): e(f"v_permlane32_swap_b32 v{PA+i}, v{PA+4+i}")
    e(f"v_lshlrev_b32 v{U2}, 3, s{S_W}"); e(f"v_lshl_add_u32 v{U0}, v{U2}, 6, v{U0}")
    for i in range(4): e(f"v_add_f32 v{PA+i}, v{PA+i}, v{PA+4+i}")
    e(f"ds_write_b64 v{U2}, {vr(M,2)} offset:{L_SP}"); e(f"v_and_b32 v{U1}, 8, v{U2}")
    for i in range(2): e(f"v_permlane16_swap_b32 v{PA+i}, v{PA+2+i}")
    e(f"v_lshlrev_b32 v{U1}, 5, v{U1}")
    for i in range(2): e(f"v_add_f32 v{PA+i}, v{PA+i}, v{PA+2+i}")
    e(f"ds_write_b64 v{U0}, {vr(PA,2)} offset:{L_CP}")
    e(f"v_lshl_add_u32 v{U1}, v0, 2, v{U1}"); e(f"v_min_u32 v{U2}, 7, v0"); e(f"v_lshlrev_b32 v{U2}, 3, v{U2}")
    return L
PC0 = int(os.environ.get("PC0", 2))
def prep_hook(a, n):
    e = a.e; n0 = 8 * PC0 - 6
    if n0 <= n < n0 + 7:
        if "pl2" in a.vm: a.vmwait("pl2")
        L = prep_lines(); c = (len(L) + 6) // 7
        for l in L[(n-n0)*c:(n-n0+1)*c]:
            if l.startswith("ds_"): a.dsop(l, "pw")
            else: e(l)
    if n == n0 + 10:
        a.lg(0); e(f"s_add_u32 s{S_TAG}, s{S_TAG}, 0x9e3779b8"); e(f"v_lshl_add_u32 v{U1}, v{U1}, 1, s70"); e(f"s_lshl_b32 s69, s69, 4"); e(f"s_add_u32 s69, s69, {WS_ST}")
        for st in (4, 2, 1):
            for i in range(st): e(f"v_add_f32 v{PL+i}, v{PL+i}, v{PL+st+i}")
        e(f"v_mov_b32 v{PL+1}, s{S_TAG}"); e(f"v_mov_b32 v{PA+2}, s{S_TAG}"); e(f"v_mov_b32 v{PA+3}, s{S_TAG}"); e(f"v_lshl_add_u32 v{U2}, v{U2}, 1, s69")
        a.vmop(f"buffer_store_dwordx2 {vr(PL,2)}, v{U1}, {sr(S_WS,4)}, 0 offen sc1", "prep")
        e("s_mov_b64 exec, 0xff")
        a.vmop(f"buffer_store_dwordx4 {vr(PA,4)}, v{U2}, {sr(S_WS,4)}, 0 offen sc1", "prep")
        e("s_mov_b64 exec, -1")
def p1hook(a, s):
    e = a.e; C = ACC + 32
    if s == PC0 + 1:
        for q in range(4): a.dsop(f"ds_read2st64_b32 {vr(PL+2*q,2)}, v{U1} offset0:{L_CP//256+4*q} offset1:{L_CP//256+4*q+2}", "pf")
        a.dsop(f"ds_read_b64 {vr(PA,2)}, v{U2} offset:{L_SP}", "pf")
    LD = []
    for q in range(5): LD += [f"s_mov_b32 s{S_T0}, {WS_CS+40960*q}", f"buffer_load_dwordx2 {vr(C+2*q,2)}, v{CS+1}, {sr(S_WS,4)}, s{S_T0} offen sc1"]
    LD += [f"buffer_load_dwordx4 {vr(M,4)}, v{CS+2}, {sr(S_WS,4)}, 0 offen sc1"]
    if s == PP1:
        e(f"s_min_u32 s{S_T0}, s{S_W}, 4"); e(f"s_lshl_b32 s{S_T0}, s{S_T0}, 6"); e(f"v_add_u32 v{CS}, s{S_T0}, v0")
        e(f"v_lshrrev_b32 v{T0}, 4, v{CS}"); e(f"v_and_b32 v{T1}, 7, v0"); e(f"v_lshl_add_u32 v{T0}, v{T0}, 3, v{T1}")
        e(f"v_bfe_u32 v{T1}, v0, 3, 1"); e(f"v_mul_u32_u24 v{T1}, 1536, v{T1}"); e(f"v_add_u32 v{T0}, v{T0}, v{T1}")
        e(f"s_mul_i32 s{S_T0}, s{S_J}, 96"); e(f"s_add_u32 s{S_T0}, s{S_T0}, {2048-64}"); e(f"s_lshl_b32 s{S_T1}, s{S_J}, 7")
        e(f"s_cmp_lt_u32 s{S_W}, 2"); e(f"s_cselect_b32 s{S_T0}, s{S_T1}, s{S_T0}"); e(f"s_cselect_b64 vcc, -1, 0")
        e(f"v_cndmask_b32 v{T0}, v{T0}, v{CS}, vcc"); e(f"v_add_lshl_u32 v{CS+1}, v{T0}, s{S_T0}, 3"); e(f"v_lshlrev_b32 v{CS}, 2, v{CS}")
        e(f"s_lshl_b32 s{S_T0}, s{S_RB}, 2"); e(f"s_add_u32 s{S_T0}, s{S_T0}, s{S_WM}"); e(f"s_lshl_b32 s{S_T0}, s{S_T0}, 9"); e(f"s_add_u32 s{S_T0}, s{S_T0}, {WS_ST}")
        e(f"v_and_b32 v{T0}, 31, v0"); e(f"v_lshl_add_u32 v{CS+2}, v{T0}, 4, s{S_T0}")
        for l in LD:
            if l.startswith("s_"): e(l)
            else: a.vmop(l, "cs")
    if s == 9:
        chk = [f"v_xor_b32 v{C+2*q+1}, s{S_TAG}, v{C+2*q+1}" for q in range(5)] + [f"v_xor_b32 v{T1}, s{S_TAG}, v{T1}"]
        chk += [f"v_or3_b32 v{T1}, v{T1}, v{C+1}, v{C+3}", f"v_or3_b32 v{T2}, v{C+5}, v{C+7}, v{C+9}", f"v_or_b32 v{T1}, v{T1}, v{T2}", f"v_cmp_ne_u32 vcc, 0, v{T1}"]
        poll_check(a, LD, "cs", chk)
        e(f"v_add_f32 v{C}, v{C}, v{C+2}"); e(f"v_add_f32 v{C+4}, v{C+4}, v{C+6}"); e(f"v_add_f32 v{C}, v{C}, v{C+8}"); e(f"v_add_f32 v{C}, v{C}, v{C+4}")
        e(f"ds_write_b32 v{CS}, v{C} offset:{L_F}")
PP1 = int(os.environ.get("PP1", 7))

def dma1(a, s, i):
    e = a.e
    if "l" in XP and s >= 4: a.vm.append(s); return
    if s < 10:
        b = slot1(s)
        if i == 0:
            e(f"s_add_u32 m0, s{S_M0X}, {b}"); e(f"s_movk_i32 s{S_D}, {s*128}")
            a.vmop(f"buffer_load_dwordx4 v{VX0}, {sr(S_X,4)}, s{S_D} offen lds", s)
        elif i == 1:
            a.vmop(f"buffer_load_dwordx4 v{VX1}, {sr(S_X,4)}, s{S_D} offen offset:1024 lds", s)
        elif i == 2:
            e(f"s_add_u32 m0, s{S_M0X}, {b+16384}"); e(f"s_mov_b32 s{S_D}, {s*245760}")
            a.vmop(f"buffer_load_dwordx4 v{VW}, {sr(S_WQ,4)}, s{S_D} offen lds", s)
        else:
            e(f"s_mov_b32 s{S_D}, {s*245760+14336}")
            a.vmop(f"buffer_load_dwordx4 v{VW}, {sr(S_WQ,4)}, s{S_D} offen offset:1024 lds", s)
    else:
        if i == 0: e(f"s_add_u32 m0, s{S_M0G}, {pslot(s)}"); e(f"s_mov_b32 s{S_D}, {(s-10)*64*3072}")
        a.vmop(f"buffer_load_dwordx4 v{VG+i}, {sr(S_GU,4)}, s{S_D} offen" + (f" offset:{1024*i}" if i else "") + " lds", s)
def dma(a, s):
    for i in range(4 if s < 10 else 3): dma1(a, s, i)

def nti(n): return (n // 2, n % 2) if n < 80 else (40 + (n - 80) // 3, (n - 80) % 3)
SHOOK = None
def reads(a, n):
    e = a.e; t, ti = nti(n); s, kk = t // 4, t % 4; wb = WB + 4 * (n % 6)
    pos = n - 8 * s if n < 80 else n - 80 - 12 * (s - 10)
    if pos == 0 and s > 0:
        if s in a.vm: a.vmwait(s)
        a.lgwait("pw")
        e("s_barrier")
        if 1 <= s - STG + 1 <= 10: stamp(a, s - STG + 1, True)
        if s < 10: p1hook(a, s)
        elif SHOOK: SHOOK(s)
    if t < 40:
        if kk == 0 and s % 2 == 1: e(f"v_xor_b32 v{RDW+ti}, 0x10000, v{RDW+ti}")
        if ti == 0:
            e(f"v_xor_b32 v{RDXT}, {kk*32+slot1(s)}, v{RDX}")
            a.dsop(f"ds_read_b128 {vr(X+4*t,4)}, v{RDXT}", n)
        ad, off, hs = RDW + ti, ((s + 1) % 2) * 32768 + 16384 + kk * 4096, 1024
    else:
        p = (s - 10) % 4
        if t > 40 and kk == 0 and p == 2: e(f"v_add_u32 v{RDG+ti}, 49152, v{RDG+ti}")
        if t > 40 and kk == 0 and p == 0: e(f"v_subrev_u32 v{RDG+ti}, 49152, v{RDG+ti}")
        ad, off, hs = RDG + ti, (p % 2) * 24576 + kk * 3072, 768
    for h in range(2):
        a.dsop(f"ds_read_b64_tr_b16 {vr(wb+2*h,2)}, v{ad} offset:{off+h*hs}", n)
    if s > 0 and s + 3 < 20:
        nd = 4 if s + 3 < 10 else 3
        sp = DSP1 if n < 80 else DSP2
        if pos % sp == 0 and pos // sp < nd: dma1(a, s + 3, pos // sp)

def relayout(a):
    e = a.e; RL = ACC + 32
    sk = a.newlab()
    e("s_cmp_ge_u32 s2, 170"); e(f"s_cbranch_scc1 {sk}")
    e(f"v_lshrrev_b32 v{T0}, 4, v0"); e(f"v_bfe_u32 v{T1}, v0, 2, 2"); e(f"v_lshl_add_u32 v{T0}, v{T0}, 3, v{T1}")
    e(f"v_and_b32 v{T1}, 3, v0"); e(f"v_lshlrev_b32 v{T1}, 3, v{T1}"); e(f"v_lshl_add_u32 v{T0}, v{T0}, 8, v{T1}")
    e(f"s_lshl_b32 s{S_T0}, s{S_W}, 5"); e(f"s_add_u32 s{S_T0}, s{S_T0}, {L_RL}"); e(f"v_add_u32 v{T0}, s{S_T0}, v{T0}")
    for k2 in range(2):
        for h in range(2):
            e(f"ds_read_b64_tr_b16 {vr(RL+4*k2+2*h,2)}, v{T0} offset:{k2*8192+h*1024}")
    e(f"v_lshlrev_b32 v{T1}, 4, v0"); e(f"s_add_u32 s{S_T0}, s68, 5120")
    e("s_waitcnt lgkmcnt(0)")
    e(f"buffer_store_dwordx4 {vr(RL,4)}, v{T1}, {sr(S_WS,4)}, s68 offen{SC}")
    e(f"buffer_store_dwordx4 {vr(RL+4,4)}, v{T1}, {sr(S_WS,4)}, s{S_T0} offen{SC}")
    a.lab(sk)

def step(a, n, vvar, hook=None):
    e = a.e; t, ti = nti(n); kk = t % 4; wb = WB + 4 * (n % 6); xs = X + 4 * (t % 40)
    a.lgwait(n)
    d = vr(ACC + 16 * ti, 16); w = vr(wb, 4); x = vr(xs, 4)
    p, q = (x, w) if vvar else (w, x)
    if "m" not in XP: e(f"v_mfma_f32_32x32x16_bf16 {d}, {p}, {q}, {'0' if t % 40 == 0 else d}")
    if n + 6 < 200: reads(a, n + 6)
    if n == 29: relayout(a)
    prep_hook(a, n)
    if n == 39: stamp(a, 3)
    if hook: hook(n)

def lcol(a, d, tmp):
    e = a.e
    e(f"v_and_b32 v{d}, 3, v0"); e(f"v_bfe_u32 v{tmp}, v0, 2, 1"); e(f"v_lshl_add_u32 v{d}, v{tmp}, 4, v{d}")
    e(f"v_bfe_u32 v{tmp}, v0, 3, 2"); e(f"v_lshl_add_u32 v{d}, v{tmp}, 2, v{d}")
def bf16r(a, r):
    a.e(f"v_cvt_pk_bf16_f32 v{r}, v{r}, v{r}"); a.e(f"v_lshlrev_b32 v{r}, 16, v{r}")

def epi1(a, vvar):
    e = a.e; C = ACC + 32
    e(f"s_lshl_b32 s{S_T1}, s{S_WM}, 7"); e(f"s_lshl_b32 s{S_T0}, s{S_WN}, 8")
    if vvar:
        lcol(a, T0, T1)
        e(f"v_lshl_add_u32 v{RDW}, v{T0}, 2, s{S_T0}")
        e(f"ds_read_b32 v{CS}, v{RDW} offset:{L_F}"); e(f"ds_read_b32 v{SUM}, v{RDW} offset:{L_F+128}")
        e(f"v_and_b32 v{T2}, 31, v0"); e(f"v_lshl_add_u32 v{T2}, v{T2}, 2, s{S_T1}")
    else:
        e(f"v_lshrrev_b32 v{RDX}, 5, v0"); e(f"v_lshl_add_u32 v{T1}, v{RDX}, 6, s{S_T0}")
        for q in range(4): e(f"ds_read_b128 {vr(C+4*q,4)}, v{T1} offset:{L_F+16*q}")
    if vvar:
        e(f"v_mul_f32 v{SSQ}, v{M}, v{R}")
        e(f"ds_write_b32 v{T2}, v{R} offset:{L_R}"); e(f"ds_write_b32 v{T2}, v{SSQ} offset:{L_RM}")
        e(f"v_lshrrev_b32 v{T1}, 5, v0"); e(f"v_lshl_add_u32 v{T2}, v{T1}, 4, s{S_T1}")
        e(f"s_sub_u32 s{S_T2}, s{S_J}, 10"); e(f"s_lshl_b32 s{S_T2}, s{S_T2}, 7"); e(f"s_lshl_b32 s{S_T3}, s{S_WN}, 6"); e(f"s_add_u32 s{S_T2}, s{S_T2}, s{S_T3}")
        e(f"s_lshl_b32 s{S_T3}, s{S_RB}, 2"); e(f"s_add_u32 s{S_T3}, s{S_T3}, s{S_WM}"); e(f"s_mul_i32 s{S_T3}, s{S_T3}, 5120")
        e(f"s_add_u32 s{S_T3}, s{S_T3}, {WS_KV+2560}")
        e(f"s_cmp_eq_u32 s{S_J}, 15"); e(f"s_cselect_b32 s{S_T4}, {HUGE}, 0")
        e(f"v_mul_u32_u24 v{T1}, 640, v{T1}"); e(f"v_add_u32 v{T1}, s{S_T4}, v{T1}")
        e(f"s_mov_b32 s{S_T4}, {327680-640}")
        AD = (RDX, RDXT)
        for ti in range(2):
            e(f"v_add_u32 v{AD[ti]}, s{S_T2}, v{T0}")
            if ti: e(f"v_add_u32 v{AD[ti]}, 32, v{AD[ti]}")
            e(f"v_mul_u32_u24 v{RDW}, 1639, v{AD[ti]}"); e(f"v_lshrrev_b32 v{RDW}, 16, v{RDW}")
            e(f"v_lshl_add_u32 v{AD[ti]}, v{AD[ti]}, 4, v{T1}"); e(f"v_mad_u32_u24 v{AD[ti]}, v{RDW}, s{S_T4}, v{AD[ti]}")
        CSP = (CS, SUM)
        for m in range(2):
            a.lg(0)
            for q in range(2):
                e(f"ds_read_b128 {vr(C+4*q,4)}, v{T2} offset:{L_R+(2*m+q)*32}"); e(f"ds_read_b128 {vr(C+8+4*q,4)}, v{T2} offset:{L_RM+(2*m+q)*32}")
            a.lg(0)
            for ti in range(2):
                b = ACC + 16 * ti + 8 * m
                for i in range(4): e(f"v_pk_mul_f32 {vr(b+2*i,2)}, {vr(b+2*i,2)}, {vr(C+2*i,2)}")
                for i in range(4): e(f"v_pk_fma_f32 {vr(b+2*i,2)}, {vr(C+8+2*i,2)}, {vr(CSP[ti],2)}, {vr(b+2*i,2)} op_sel_hi:[1,0,1]")
                for i in range(4): e(f"v_cvt_pk_bf16_f32 v{b+i}, v{b+2*i}, v{b+2*i+1}")
                a.vmop(f"buffer_store_dwordx4 {vr(b,4)}, v{AD[ti]}, {sr(S_WS,4)}, s{S_T3} offen offset:{1280*m}{SC}", "qkv")
    else:
        e(f"s_cmp_lt_u32 s{S_J}, 5")
        e(f"s_cselect_b32 s{S_T2}, {hex(0x3ea52b5c)}, 1.0")
        e(f"s_cselect_b32 s{S_T3}, 0, 5"); e(f"s_cselect_b32 s{S_T4}, 1, 2"); e(f"s_cselect_b32 s{S_T5}, 0, {WS_KV}")
        e(f"v_mul_f32 v{SUM}, s{S_T2}, v{R}")
        e(f"s_sub_u32 s{S_T3}, s{S_J}, s{S_T3}"); e(f"s_lshl_b32 s{S_T3}, s{S_T3}, 4"); e(f"s_lshl_b32 s{S_T2}, s{S_WN}, 3"); e(f"s_add_u32 s{S_T3}, s{S_T3}, s{S_T2}")
        e(f"s_lshl_b32 s{S_T2}, s{S_RB}, 2"); e(f"s_add_u32 s{S_T2}, s{S_T2}, s{S_WM}"); e(f"s_mul_i32 s{S_T2}, s{S_T2}, 2560")
        e(f"s_mul_i32 s{S_T2}, s{S_T2}, s{S_T4}"); e(f"s_add_u32 s{S_T5}, s{S_T5}, s{S_T2}")
        e(f"s_mul_i32 s{S_T4}, s{S_T4}, 163840"); e(f"s_sub_u32 s{S_T4}, s{S_T4}, 2560")
        e(f"v_lshrrev_b32 v{T0}, 5, v0"); e(f"v_lshl_add_u32 v{T0}, v{T0}, 1, s{S_T3}")
        e(f"v_and_b32 v{T2}, 31, v0"); e(f"v_lshlrev_b32 v{T2}, 4, v{T2}")
        for ti in range(2):
            b = ACC + 16 * ti
            a.lg(0)
            for i in range(8): e(f"v_pk_fma_f32 {vr(b+2*i,2)}, {vr(C+2*i,2)}, {vr(M,2)}, {vr(b+2*i,2)} op_sel_hi:[1,0,1]")
            if ti == 0:
                for q in range(4): e(f"ds_read_b128 {vr(C+4*q,4)}, v{T1} offset:{L_F+128+16*q}")
            for i in range(8): e(f"v_pk_mul_f32 {vr(b+2*i,2)}, {vr(b+2*i,2)}, {vr(SUM,2)} op_sel_hi:[1,0]")
            for i in range(8): e(f"v_cvt_pk_bf16_f32 v{b+i}, v{b+2*i}, v{b+2*i+1}")
            for h in range(2):
                ad = (RDX, RDXT)[h]
                e(f"v_add_u32 v{ad}, {4*ti+h}, v{T0}"); e(f"v_mul_u32_u24 v{RDW}, 205, v{ad}"); e(f"v_lshrrev_b32 v{RDW}, 10, v{RDW}")
                e(f"v_lshl_add_u32 v{ad}, v{ad}, 9, v{T2}"); e(f"v_mad_u32_u24 v{ad}, v{RDW}, s{S_T4}, v{ad}")
                a.vmop(f"buffer_store_dwordx4 {vr(b+4*h,4)}, v{ad}, {sr(S_WS,4)}, s{S_T5} offen{SC}", "qkv")
    a.nop(2)

def epi2(a):
    e = a.e; C = X
    e(f"v_lshrrev_b32 v{T0}, 5, v0")
    e(f"s_mul_i32 s{S_T0}, s{S_WN}, 384"); e(f"v_lshl_add_u32 v{T1}, v{T0}, 6, s{S_T0}")
    for ti in range(3):
        for q in range(4): e(f"ds_read_b128 {vr(C+16*ti+4*q,4)}, v{T1} offset:{L_FG+128*ti+16*q}")
    e(f"v_mul_f32 v{SUM}, v{R}, v{R}")
    e(f"v_bfe_u32 v{T2}, v0, 4, 1"); e(f"v_mul_u32_u24 v{T2}, 69632, v{T2}"); e(f"v_lshl_add_u32 v{T2}, v{T0}, 8, v{T2}")
    e(f"v_and_b32 v{T0}, 15, v0"); e(f"v_lshl_add_u32 v{T2}, v{T0}, 4, v{T2}")
    e(f"s_lshl_b32 s{S_T1}, s{S_RB}, 2"); e(f"s_add_u32 s{S_T1}, s{S_T1}, s{S_WM}"); e(f"s_mul_i32 s{S_T1}, s{S_T1}, {2*69632}")
    e(f"s_lshl_b32 s{S_T2}, s{S_J}, 1"); e(f"s_add_u32 s{S_T2}, s{S_T2}, s{S_WN}"); e(f"s_mul_i32 s{S_T2}, s{S_T2}, 1536")
    e(f"s_add_u32 s{S_T1}, s{S_T1}, s{S_T2}"); e(f"s_add_u32 s{S_T1}, s{S_T1}, {WS_A2}")
    for ti in range(3):
        b = ACC + 16 * ti
        a.lg(8 - 4 * ti)
        for i in range(8): e(f"v_pk_fma_f32 {vr(b+2*i,2)}, {vr(C+16*ti+2*i,2)}, {vr(M,2)}, {vr(b+2*i,2)} op_sel_hi:[1,0,1]")
        for i in range(4): e(f"v_pk_mul_f32 {vr(b+2*i,2)}, {vr(b+2*i,2)}, {vr(SUM,2)} op_sel_hi:[1,0]")
        for i in range(4): e(f"v_pk_mul_f32 {vr(b+2*i,2)}, {vr(b+2*i,2)}, {vr(b+8+2*i,2)}")
        for i in range(4): e(f"v_cvt_pk_bf16_f32 v{b+i}, v{b+2*i}, v{b+2*i+1}")
        a.vmop(f"buffer_store_dwordx4 {vr(b,4)}, v{T2}, {sr(S_WS,4)}, s{S_T1} offen offset:{512*ti}{SC}", "h")

def gemm1(a, hook2=None):
    e = a.e
    addr_setup(a)
    for s in range(4):
        dma(a, s)
        if s == 1: addr_setup2(a)
        if s == PC0 - 1: prep_load(a)
    addr_setup3(a)
    stamp(a, 1); a.vmwait(0); e("s_barrier"); stamp(a, 2)
    if STG == 0: stamp(a, 1, True)
    e(f"s_mov_b32 s{S_T0}, {WS_EP}"); e(f"s_load_dword s{S_TAG}, s[66:67], s{S_T0}")
    for n in range(6): reads(a, n)
    lv, lj = a.newlab("LV"), a.newlab("LJ")
    e(f"s_cmp_ge_u32 s{S_J}, 10"); e(f"s_cbranch_scc1 {lv}")
    vm0 = list(a.vm); lq0 = list(a.lq)
    for n in range(80): step(a, n, False)
    stamp(a, 4); epi1(a, False)
    e(f"s_branch {lj}")
    a.lab(lv); a.vm = list(vm0); a.lq = list(lq0)
    for n in range(80): step(a, n, True)
    stamp(a, 4); epi1(a, True)
    a.lab(lj)
    stamp(a, 5)
    for n in range(80, 200): step(a, n, False, hook2)
    stamp(a, 6); epi2(a)
```

```python
from common import *
VA, VB, AO, T0, T1, T2 = 13, 11, 16, 14, 15, 1
XR = (2, 4, 8)
PV, PA = 19, 7
S0 = 96
SL = [80, 84, 88, 92, 240, 244, 248, 252, 20] + list(range(24, 48, 4))
for g in range(18):
    if g: SL.append(S0 + 8 * (g - 1))
    SL.append(S0 + 8 * g + 4)
SL += [S0 + 8 * 17] + list(range(48, 80, 4))
NB, AD = 5, 3
BS = [SL[5*i:5*i+5] for i in range(NB)]
AS = [SL[5*NB+4*i:5*NB+4*i+4] for i in range(AD)]
ACC = SL[-20:]
RB = [s for s in SL if s not in ACC]
LD = " sc1"
S_AOK = 68
PLD = f"buffer_load_dword v{PV}, v{PA}, {sr(S_WS,4)}, 0 offen sc1"
def setup2(a):
    e = a.e
    e(f"s_mul_i32 s{S_T0}, s{S_RB2}, {4*69632}"); e(f"s_lshl_b32 s{S_T1}, s{S_W}, 10"); e(f"s_add_u32 s{S_T0}, s{S_T0}, s{S_T1}")
    e(f"v_lshl_add_u32 v{VA}, v0, 4, s{S_T0}")
    e(f"s_mul_i32 s{S_T0}, s{S_CB}, 68"); e(f"s_add_u32 s{S_T0}, s{S_T0}, s{S_W}"); e(f"s_mul_i32 s{S_T0}, s{S_T0}, 5120")
    e(f"v_lshl_add_u32 v{VB}, v0, 4, s{S_T0}")
    e(f"s_lshr_b32 s{S_T0}, s{S_RB2}, 1"); e(f"s_lshl_b32 s{S_T0}, s{S_T0}, 12"); e(f"s_add_u32 s{S_T0}, s{S_T0}, {WS_FL}")
    e(f"v_and_b32 v{PA}, 15, v0"); e(f"v_lshl_add_u32 v{PA}, v{PA}, 8, s{S_T0}")
def bl(i, n): return [f"s_mov_b32 s{S_T1}, {WS_B2+i*40960+n*1024}", f"buffer_load_dwordx4 {vr(BS[i%NB][n],4)}, v{VB}, {sr(S_WS,4)}, s{S_T1} offen{LD}"]
def al(i, m): return [f"s_mov_b32 s{S_T1}, {WS_A2+i*8192+m*69632}", f"buffer_load_dwordx4 {vr(AS[i%AD][m],4)}, v{VA}, {sr(S_WS,4)}, s{S_T1} offen{LD}"]
def ld(a, l, tag=None):
    a.e(l[0])
    if tag is None: a.e(l[1])
    else: a.vmop(l[1], tag)
class Pre:
    def __init__(s, a): s.a = a; s.nb = 0; s.na = 0
    def b(s, k, avail):
        for _ in range(k):
            if s.nb < min(5 * NB, avail): ld(s.a, bl(s.nb // 5, s.nb % 5), ("g2", s.nb // 5)); s.nb += 1
    def g(s, g):
        a = s.a; av = 15 + 2 * g + 1
        s.b(2, av)
        if g == GP0: a.vmop(PLD, "poll")
        if g == GP1:
            a.vmwait("poll")
            for c in fchk(PV, 2): a.e(c)
            a.e(f"s_cmp_lg_u64 vcc, 0"); a.e(f"s_cselect_b32 s{S_AOK}, 1, 0"); a.e(f"s_cselect_b32 s{S_T0}, {HUGE}, 0"); a.e(f"v_add_u32 v{VA}, s{S_T0}, v{VA}")
        if g >= GP1:
            for _ in range(3):
                if s.na < 4 * AD:
                    assert 5 * NB + s.na < av
                    ld(a, al(s.na // 4, s.na % 4), ("g2", s.na // 4)); s.na += 1
GP0, GP1 = int(os.environ.get("GP0", 8)), int(os.environ.get("GP1", 13))
OCH = int(os.environ.get("OCH", 3))
def mfmas(a, i, ins=None):
    for m in range(4):
        for n in range(5):
            d = vr(ACC[5 * m + n], 4)
            a.e(f"v_mfma_f32_16x16x32_bf16 {d}, {vr(BS[i%NB][n],4)}, {vr(AS[i%AD][m],4)}, {d if i else '0'}")
            if ins: ins(5 * m + n)
def xload(a):
    e = a.e
    e(f"v_and_b32 v{T0}, 15, v0"); e(f"v_mul_u32_u24 v{T0}, 1280, v{T0}"); e(f"v_lshrrev_b32 v{T1}, 4, v0"); e(f"v_lshl_add_u32 v{T0}, v{T1}, 3, v{T0}")
    e(f"s_mul_i32 s{S_T2}, s{S_RB2}, {64*1280}"); e(f"s_mul_i32 s{S_T3}, s{S_CB}, 160"); e(f"s_add_u32 s{S_T2}, s{S_T2}, s{S_T3}")
    for u in range(3):
        e(f"s_add_u32 s{S_T3}, s{S_W}, {8*u}"); e(f"s_min_u32 s{S_T3}, s{S_T3}, 19")
        e(f"s_mul_i32 s{S_T4}, s{S_T3}, 205"); e(f"s_lshr_b32 s{S_T4}, s{S_T4}, 10")
        e(f"s_mul_i32 s{S_T4}, s{S_T4}, {16*1280-160}"); e(f"s_lshl_b32 s{S_T3}, s{S_T3}, 5"); e(f"s_add_u32 s{S_T3}, s{S_T3}, s{S_T4}")
        e(f"s_add_u32 s{S_T3}, s{S_T3}, s{S_T2}"); e(f"v_add_u32 v{AO+u}, s{S_T3}, v{T0}")
        a.vmop(f"buffer_load_dwordx2 {vr(XR[u],2)}, v{AO+u}, {sr(S_X,4)}, 0 offen", "x")
    e(f"s_mul_i32 s{S_T0}, s{S_W}, 20480"); e(f"v_lshl_add_u32 v{T1}, v0, 4, s{S_T0}")
    e(f"s_lshl_b32 s{S_T0}, s{S_W}, 10"); e(f"v_lshl_add_u32 v{T0}, v0, 4, s{S_T0}")
def last(a, i):
    def wr(t): a.e(f"ds_write_b128 v{T1}, {vr(ACC[t],4)} offset:{t*1024}")
    mfmas(a, i, lambda t: wr(t - 5) if t >= 5 else None); a.nop(2)
    wr(15); wr(16); wr(17); a.nop(1); wr(18); a.nop(1); wr(19)
def reduce_store(a):
    e = a.e
    e(f"v_add_u32 v{T1}, {3*20480}, v{T0}"); e(f"v_add_u32 v{T2}, {6*20480}, v{T0}")
    a.lg(0); e("s_barrier")
    end = a.newlab(); X4 = 20
    for u in range(3):
        if u == 2: e(f"s_cmp_ge_u32 s{S_W}, 4"); e(f"s_cbranch_scc1 {end}")
        b = S0 + 32 * u
        if u != 1:
            for uu in ((0, 1) if u == 0 else (2,)):
                for w in range(8):
                    e(f"ds_read_b128 {vr(S0+32*uu+4*w,4)}, v{(T0,T1,T2)[w//3]} offset:{(w%3)*20480+uu*8192}")
        e(f"v_lshlrev_b32 v{X4}, 16, v{XR[u]}"); e(f"v_and_b32 v{X4+1}, 0xffff0000, v{XR[u]}")
        e(f"v_lshlrev_b32 v{X4+2}, 16, v{XR[u]+1}"); e(f"v_and_b32 v{X4+3}, 0xffff0000, v{XR[u]+1}")
        a.lg(8 if u == 0 else 0)
        for st in (16, 8, 4):
            for i in range(0, st, 2): e(f"v_pk_add_f32 {vr(b+i,2)}, {vr(b+i,2)}, {vr(b+st+i,2)}")
        for i in (0, 2): e(f"v_pk_add_f32 {vr(b+i,2)}, {vr(b+i,2)}, {vr(X4+i,2)}")
        e(f"v_cvt_pk_bf16_f32 v{b}, v{b}, v{b+1}"); e(f"v_cvt_pk_bf16_f32 v{b+1}, v{b+2}, v{b+3}")
        e(f"buffer_store_dwordx2 {vr(b,2)}, v{AO+u}, {sr(S_OUT,4)}, 0 offen")
    a.lab(end)
def gemm2(a):
    e = a.e
    lt, rt, lp, go = a.newlab("LT"), a.newlab("RT"), a.newlab("LP"), a.newlab("GO")
    e(f"s_cmp_lg_u32 s{S_AOK}, 0"); e(f"s_cbranch_scc1 {lt}"); a.lab(rt)
    t = [f"{lt}:", f"  v_subrev_u32 v{VA}, {HUGE}, v{VA}", f"  s_mov_b32 s{S_CNT}, 0", f"{lp}:", "  " + PLD, "  s_waitcnt vmcnt(0)"] + ["  " + c for c in fchk(PV, 2)]
    t += [f"  s_cbranch_vccz {go}", f"  s_add_u32 s{S_CNT}, s{S_CNT}, 1", f"  s_cmp_lt_u32 s{S_CNT}, 0x40000", f"  s_cbranch_scc1 {lp}", f"{go}:"]
    for k in range(4 * AD): t += ["  " + l for l in al(k // 4, k % 4)]
    t += ["  s_waitcnt vmcnt(0)", f"  s_branch {rt}"]
    a.tail += t
    pend = []
    for i in range(7):
        if ("g2", i) in a.vm: a.vmwait(("g2", i))
        if i == 0: stamp(a, 9)
        cur = pend; pend = []
        def ins(t):
            if t % 2 == 1 and cur: ld(a, *cur.pop(0))
        mfmas(a, i, ins)
        assert not cur
        if i == 0: a.vmwait("o"); e("s_barrier"); flag(a, 3, T0, T1)
        if i == OCH - 1: a.vmop(PLD, "poll")
        if i == OCH: poll_check(a, [PLD], "poll", fchk(PV, 3))
        if i == 1: xload(a)
        for k in range(AD, 8):
            if max(k - AD, OCH if k >= 6 else 0) == i: pend += [(al(k, m), ("g2", k)) for m in range(4)]
        if i + NB < 8: pend += [(bl(i + NB, n), ("g2", i + NB)) for n in range(5)]
        if i >= OCH:
            for p in pend: ld(a, *p)
            pend = []
        for which, at in ((bl, 8 - NB), (al, max(8 - AD, OCH))):
            if i == at:
                sk = a.newlab(); e(f"s_cmp_ge_u32 s{S_W}, 4"); e(f"s_cbranch_scc1 {sk}")
                for k in range(5 if which is bl else 4): ld(a, which(8, k))
                a.lab(sk)
    hi, jn = a.newlab(), a.newlab()
    e(f"s_cmp_ge_u32 s{S_W}, 4"); e(f"s_cbranch_scc1 {hi}")
    e("s_waitcnt vmcnt(4)"); mfmas(a, 7)
    e("s_waitcnt vmcnt(0)"); last(a, 8); e(f"s_branch {jn}")
    a.lab(hi); a.vmall(); last(a, 7); a.lab(jn)
    stamp(a, 10); reduce_store(a)
```

```python
from common import *
import gemm1 as G, attn, gemm2, sys
a = Asm(); e = a.e
lab = NAME + "_kernel"
VL, PQ = 3, G.X + 88
QLD = f"buffer_load_dword v{PQ}, v{PQ+1}, {sr(S_WS,4)}, 0 offen sc1"
QS = int(os.environ.get("QS", 18))
QP = int(os.environ.get("QP", 16))
N0 = 80 + 12 * (QS - 10) - 6
def shook(s):
    if s == 13: flag(a, 1, G.T0, G.T1)
    if s == QS:
        e(f"s_or_b32 s{S_T0}, s2, s{S_W}"); e(f"s_cselect_b32 s{S_T0}, {HUGE}, 0"); e(f"s_add_u32 s{S_T0}, s{S_T0}, {WS_EP}")
        e(f"v_lshl_add_u32 v{PQ+1}, v0, 2, s{S_T0}"); e(f"v_mov_b32 v{PQ}, s{S_TAG}")
        a.vmop(f"buffer_store_dword v{PQ}, v{PQ+1}, {sr(S_WS,4)}, 0 offen sc1", "flag")
G.SHOOK = shook
def hook2(n):
    if n == N0 - 1 - QP:
        e(f"v_lshlrev_b32 v{VL}, 4, v0"); e(f"s_lshl_b32 s{S_T0}, s{S_W}, 13"); e(f"s_add_u32 s{S_T0}, s{S_T0}, {WS_FL}")
        e(f"v_and_b32 v{PQ+1}, 31, v0"); e(f"v_lshl_add_u32 v{PQ+1}, v{PQ+1}, 8, s{S_T0}")
        a.vmop(QLD, "poll"); attn.kv_setup(a)
    if n == N0 - 1: poll_check(a, [QLD], "poll", fchk(PQ, 1))
    if N0 <= n < N0 + 8: attn.kv_load(a, n - N0, VL)
    if n == N0 + 8: attn.q_load(a, G.T0, G.T1)
def mid():
    a.vmwait("h"); e("s_barrier"); flag(a, 2, 14, 15)
setup(a, "END"); stamp_init(a); stamp(a, 0)
G.gemm1(a, hook2)
attn.kv_write(a, VL)
gemm2.setup2(a)
attn.attn(a, mid, gemm2.Pre(a))
gemm2.gemm2(a)
stamp_out(a, 0); a.lab("END"); e("s_endpgm")
o = "; @launch grid=(256,1,1) block=(512,1,1) lds=163840\n"
o += '.amdgcn_target "amdgcn-amd-amdhsa--gfx950"\n.text\n'
o += kernel_hdr(lab) + "\n".join(a.L + a.tail) + "\n"
o += '.section .rodata,"a"\n' + kernel_desc(lab, 256)
open(sys.argv[1], "w").write(o)
```
